```python
import torch

def _softmax(x, axis=-1):
    return torch.softmax(x, dim=axis)
def _gelu(x):
    return torch.nn.functional.gelu(x, approximate="tanh")
def _silu(x):
    return torch.nn.functional.silu(x)
def _sigmoid(x):
    return torch.sigmoid(x)
def _layernorm(x, axis=-1, eps=1e-5):
    m = x.mean(dim=axis, keepdim=True)
    v = x.var(dim=axis, keepdim=True, unbiased=False)
    return (x - m) / torch.sqrt(v + eps)
def _scatter_add(tgt, idx, src, axis=0):
    return tgt.clone().index_add_(axis, idx, src)
def _segment_sum(src, seg, n):
    out = torch.zeros((n,) + src.shape[1:], dtype=src.dtype)
    return out.index_add_(0, seg, src)
def _pad(x, pw):
    flat = tuple(v for pair in reversed(pw) for v in pair)
    return torch.nn.functional.pad(x, flat)

kernel_name = 'standalone__paged_block_table_kv_radixattention__decode'

def setup_inputs():

    _w = (lambda a: (lambda t: t.to(torch.bfloat16) if t.is_floating_point() else t)(torch.as_tensor(a)))
    B, H, Hkv, Dh = 1, 32, 4, 128
    Lk = 65536
    bs = 16
    nb = max(2, Lk // bs)
    P = max(1, nb // 2)
    n_phys = P + B * (nb - P)
    shared = torch.arange(P, dtype=torch.int64)
    priv = P + torch.arange(B * (nb - P), dtype=torch.int64).reshape(B, nb - P)
    bt = torch.cat([torch.tile(shared[None, :], (B, 1)), priv], dim=1)
    ctx = nb * bs - (torch.arange(1, B + 1, dtype=torch.int64) * 2654435761) % max(1, (nb * bs - P * bs) // 2)
    return {
        "q": _w((lambda *s: torch.randn(*s, dtype=torch.bfloat16) * 0.8)(B, H, Dh)),
        "k_cache": _w((lambda *s: torch.randn(*s, dtype=torch.bfloat16) * 0.8)(n_phys, bs, Hkv, Dh)),
        "v_cache": _w((lambda *s: torch.randn(*s, dtype=torch.bfloat16) * 0.05)(n_phys, bs, Hkv, Dh)),
        "block_table": _w(bt.to(torch.int64)),
        "ctx_lens": _w(torch.as_tensor(ctx).to(torch.int64)),
    }

def reference(q, k_cache, v_cache, block_table, ctx_lens):
    B, H, Dh = q.shape
    n_phys, bs, Hkv, _ = k_cache.shape
    nb = block_table.shape[1]
    Lk = nb * bs
    rep = H // Hkv
    k = k_cache[block_table].reshape(B, Lk, Hkv, Dh)
    v = v_cache[block_table].reshape(B, Lk, Hkv, Dh)
    k = (lambda x, n, axis: torch.repeat_interleave(x, n, dim=axis))(k, rep, axis=2)
    v = (lambda x, n, axis: torch.repeat_interleave(x, n, dim=axis))(v, rep, axis=2)
    scores = torch.einsum("bhd,bkhd->bhk", q, k) * (Dh ** -0.5)
    pos = torch.arange(Lk)
    valid = pos[None, :] < ctx_lens[:, None]
    scores = torch.where(valid[:, None, :], scores, -1e9)
    p = _softmax(scores, axis=-1)
    return torch.einsum("bhk,bkhd->bhd", p, v)
```

```python
import sys

NAME = "standalone__paged_block_table_kv_radixattention__decode"
HDR = open("cdna_kernels/%s.s.ref" % NAME).read().split("; Override launch geometry")[0]

class Asm:
    def __init__(self):
        self.lines = []
    def __call__(self, s):
        self.lines.append("    " + s)
    def label(self, s):
        self.lines.append(s + ":")
    def raw(self, s):
        self.lines.append(s)
    def text(self):
        return "\n".join(self.lines) + "\n"

def vr(a, n=1):
    return "v%d" % a if n == 1 else "v[%d:%d]" % (a, a + n - 1)
def sr(a, n=1):
    return "s%d" % a if n == 1 else "s[%d:%d]" % (a, a + n - 1)

def gen(G=256, D=4, nt=False):
    SUBS = 2
    NPG = 4096 // (G * SUBS)
    NTF = " nt" if nt else ""
    a = Asm()
    a.raw(HDR.rstrip())
    a.raw("; @launch kernel=fd_main_kernel grid=(%d,1,1) block=(512,1,1) lds=%d" % (G, 8 * 64 * 80))
    a.raw("; @launch kernel=fd_comb_kernel grid=(256,1,1) block=(64,1,1) lds=0")
    a.raw('.amdgcn_target "amdgcn-amd-amdhsa--gfx950"')
    a.raw(".text")
    a.raw(".globl fd_main_kernel")
    a.raw(".p2align 8")
    a.raw(".type fd_main_kernel,@function")
    a.label("fd_main_kernel")
    vKoff, vVoff, vTok, vLds = 1, 2, 3, 92
    vQ = 4
    vAcc = 20
    vS = 52
    vM, vMc, vL, vT, vT2, vMn, vMcn, vAl = 56, 57, 58, 59, 60, 61, 62, 63
    vP = 64
    vPk = 68
    vVt = 72
    vNinf = 88
    vSt = 89
    vSlot = 96
    nvgpr = vSlot + D * 32
    sQ, sK, sV, sBT = 4, 6, 8, 10
    sCtxP, sWsP = 12, 14
    sSK, sSV, sSQ, sSW = 16, 20, 24, 28
    sWave, sHead, sSub, sCtx, sNp, sLast, sRem = 32, 33, 34, 35, 36, 37, 38
    sOff = 40
    sC, sSelLo, sSelHi, sP0, sTmp, sTmp2 = 48, 49, 50, 51, 52, 53
    sBTb = 54
    a("s_cmp_ge_u32 s2, %d" % G)
    a("s_cbranch_scc1 L_main_end")
    a("s_load_dwordx8 s[4:11], s[0:1], 0")
    a("s_load_dwordx2 s[12:13], s[0:1], 32")
    a("s_load_dwordx2 s[14:15], s[0:1], 56")
    a("v_lshrrev_b32 v1, 6, v0")
    a("v_and_b32 v0, 63, v0")
    a("v_readfirstlane_b32 %s, v1" % sr(sWave))
    a("v_and_b32 %s, 15, v0" % vr(vT))
    a("v_lshrrev_b32 %s, 4, v0" % vr(vT2))
    a("s_and_b32 %s, %s, 3" % (sr(sHead), sr(sWave)))
    a("s_lshr_b32 %s, %s, 2" % (sr(sSub), sr(sWave)))
    a("s_lshl_b32 %s, %s, 8" % (sr(sTmp), sr(sHead)))
    a("s_mul_i32 %s, %s, %d" % (sr(sP0), sr(sSub), G))
    a("s_add_u32 %s, %s, s2" % (sr(sP0), sr(sP0)))
    a("v_lshlrev_b32 %s, 10, %s" % (vr(vKoff), vr(vT)))
    a("v_lshl_add_u32 %s, %s, 4, %s" % (vr(vKoff), vr(vT2), vr(vKoff)))
    a("v_add_u32 %s, %s, %s" % (vr(vKoff), sr(sTmp), vr(vKoff)))
    a("v_lshlrev_b32 %s, 12, %s" % (vr(vVoff), vr(vT2)))
    a("v_lshl_add_u32 %s, %s, 4, %s" % (vr(vVoff), vr(vT), vr(vVoff)))
    a("v_add_u32 %s, %s, %s" % (vr(vVoff), sr(sTmp), vr(vVoff)))
    a("v_lshlrev_b32 %s, 2, %s" % (vr(vTok), vr(vT2)))
    a("s_lshl_b32 %s, %s, 11" % (sr(sTmp2), sr(sHead)))
    a("v_lshlrev_b32 %s, 8, %s" % (vr(vSt), vr(vT)))
    a("v_lshl_add_u32 %s, %s, 4, %s" % (vr(vSt), vr(vT2), vr(vSt)))
    a("v_add_u32 %s, %s, %s" % (vr(vSt), sr(sTmp2), vr(vSt)))
    a("v_mov_b32 %s, 0x40000000" % vr(vAl))
    a("v_cmp_gt_u32 vcc, 8, %s" % vr(vT))
    a("s_mov_b32 %s, 0x3e0293ee" % sr(sC))
    a("s_mov_b32 %s, 0x05040100" % sr(sSelLo))
    a("v_cndmask_b32 %s, %s, %s, vcc" % (vr(vSt), vr(vAl), vr(vSt)))
    a("s_mov_b32 %s, 0x07060302" % sr(sSelHi))
    a("s_lshl_b32 %s, %s, 2" % (sr(sTmp), sr(sP0)))
    a("s_waitcnt lgkmcnt(0)")
    a("s_load_dword %s, %s, 0" % (sr(sCtx), sr(sCtxP, 2)))
    a("s_add_u32 %s, %s, %s" % (sr(sBTb), sr(sBT), sr(sTmp)))
    a("s_addc_u32 %s, %s, 0" % (sr(sBTb + 1), sr(sBT + 1)))
    for k in range(NPG):
        a("s_load_dword %s, %s, %d" % (sr(sOff + k), sr(sBTb, 2), k * SUBS * G * 4))
    for (srd, ptr, nbytes) in ((sSK, sK, 0x4000000), (sSV, sV, 0x4000000), (sSQ, sQ, 8192), (sSW, sWsP, 0x10000000)):
        a("s_mov_b32 %s, %s" % (sr(srd), sr(ptr)))
        a("s_and_b32 %s, %s, 0xffff" % (sr(srd + 1), sr(ptr + 1)))
        a("s_mov_b32 %s, 0x%x" % (sr(srd + 2), nbytes))
        a("s_mov_b32 %s, 0x00020000" % sr(srd + 3))
    for r in range(32):
        a("v_mov_b32 %s, 0" % vr(vAcc + r))
    a("v_mov_b32 %s, 0xff800000" % vr(vNinf))
    a("v_mov_b32 %s, 0xff800000" % vr(vM))
    a("v_mov_b32 %s, 0xff800000" % vr(vMc))
    a("v_mov_b32 %s, 0" % vr(vL))
    a("s_waitcnt lgkmcnt(0)")
    a("s_cmp_lt_i32 %s, 1" % sr(sCtx))
    a("s_cselect_b32 %s, 0, 8192" % sr(sSQ + 2))
    a("s_cselect_b32 %s, 0x10000, %s" % (sr(sCtx), sr(sCtx)))
    a("s_min_u32 %s, %s, 0x10000" % (sr(sCtx), sr(sCtx)))
    a("s_add_u32 %s, %s, 15" % (sr(sNp), sr(sCtx)))
    a("s_lshr_b32 %s, %s, 4" % (sr(sNp), sr(sNp)))
    a("s_sub_u32 %s, %s, 1" % (sr(sLast), sr(sNp)))
    a("s_lshl_b32 %s, %s, 4" % (sr(sTmp), sr(sLast)))
    a("s_sub_u32 %s, %s, %s" % (sr(sRem), sr(sCtx), sr(sTmp)))
    for j in range(4):
        a("buffer_load_dwordx4 %s, %s, %s, 0 offen offset:%d" % (vr(vQ + 4 * j, 4), vr(vSt), sr(sSQ, 4), 64 * j))
    for k in range(NPG):
        a("s_add_i32 %s, %s, 4096" % (sr(sTmp), sr(sOff + k)))
        a("s_cmp_lt_i32 %s, 0" % sr(sOff + k))
        a("s_cselect_b32 %s, %s, %s" % (sr(sOff + k), sr(sTmp), sr(sOff + k)))
        a("s_lshl_b32 %s, %s, 14" % (sr(sOff + k), sr(sOff + k)))
        a("s_add_u32 %s, %s, %d" % (sr(sTmp), sr(sP0), k * SUBS * G))
        a("s_cmp_lt_u32 %s, %s" % (sr(sTmp), sr(sNp)))
        a("s_cselect_b32 %s, %s, 0x80000000" % (sr(sOff + k), sr(sOff + k)))

    def loadK(k):
        b = vSlot + (k % D) * 32
        for j in range(4):
            a("buffer_load_dwordx4 %s, %s, %s, %s offen offset:%d%s" % (vr(b + 4 * j, 4), vr(vKoff), sr(sSK, 4), sr(sOff + k), 64 * j, NTF))
    def loadV(k):
        b = vSlot + (k % D) * 32 + 16
        for r in range(4):
            a("buffer_load_dwordx4 %s, %s, %s, %s offen offset:%d%s" % (vr(b + 4 * r, 4), vr(vVoff), sr(sSV, 4), sr(sOff + k), 1024 * r, NTF))
    seq = []
    for k in range(min(D, NPG)):
        loadK(k); seq.append(("K", k))
        loadV(k); seq.append(("V", k))
    def wait_for(item):
        idx = seq.index(item)
        n = (len(seq) - 1 - idx) * 4
        a("s_waitcnt vmcnt(%d)" % n)

    for k in range(NPG):
        b = vSlot + (k % D) * 32
        a("s_add_u32 %s, %s, %d" % (sr(sTmp), sr(sP0), k * SUBS * G))
        a("s_cmp_ge_u32 %s, %s" % (sr(sTmp), sr(sNp)))
        a("s_cbranch_scc1 L_epi")
        wait_for(("K", k))
        for j in range(4):
            c = "0" if j == 0 else vr(vS, 4)
            a("v_mfma_f32_16x16x32_bf16 %s, %s, %s, %s" % (vr(vS, 4), vr(b + 4 * j, 4), vr(vQ + 4 * j, 4), c))
        if k + D < NPG:
            loadK(k + D); seq.append(("K", k + D))
            a("s_nop 3")
        else:
            a("s_nop 7")
        a("s_cmp_lg_u32 %s, %s" % (sr(sTmp), sr(sLast)))
        a("s_cbranch_scc1 L_nomask%d" % k)
        for r in range(4):
            a("v_add_u32 %s, %d, %s" % (vr(vT), r, vr(vTok)))
            a("v_cmp_gt_u32 vcc, %s, %s" % (sr(sRem), vr(vT)))
            a("s_nop 1")
            a("v_cndmask_b32 %s, %s, %s, vcc" % (vr(vS + r), vr(vNinf), vr(vS + r)))
        a.label("L_nomask%d" % k)
        a("v_max3_f32 %s, %s, %s, %s" % (vr(vT), vr(vS), vr(vS + 1), vr(vS + 2)))
        a("v_max3_f32 %s, %s, %s, %s" % (vr(vT), vr(vT), vr(vS + 3), vr(vM)))
        a("v_mov_b32 %s, %s" % (vr(vT2), vr(vT)))
        a("s_nop 1")
        a("v_permlane32_swap_b32 %s, %s" % (vr(vT), vr(vT2)))
        a("v_max_f32 %s, %s, %s" % (vr(vT), vr(vT), vr(vT2)))
        a("v_mov_b32 %s, %s" % (vr(vT2), vr(vT)))
        a("s_nop 1")
        a("v_permlane16_swap_b32 %s, %s" % (vr(vT), vr(vT2)))
        a("v_max_f32 %s, %s, %s" % (vr(vMn), vr(vT), vr(vT2)))
        a("v_cmp_gt_f32 vcc, %s, %s" % (vr(vMn), vr(vM)))
        a("v_mul_f32 %s, %s, %s" % (vr(vMcn), sr(sC), vr(vMn)))
        a("s_cbranch_vccz L_noresc%d" % k)
        a("v_sub_f32 %s, %s, %s" % (vr(vAl), vr(vMc), vr(vMcn)))
        a("v_exp_f32 %s, %s" % (vr(vAl), vr(vAl)))
        a("v_mov_b32 %s, %s" % (vr(vM), vr(vMn)))
        a("v_mov_b32 %s, %s" % (vr(vMc), vr(vMcn)))
        a("v_mul_f32 %s, %s, %s" % (vr(vL), vr(vL), vr(vAl)))
        for r in range(32):
            a("v_mul_f32 %s, %s, %s" % (vr(vAcc + r), vr(vAcc + r), vr(vAl)))
        a.label("L_noresc%d" % k)
        for r in range(4):
            a("v_fma_f32 %s, %s, %s, -%s" % (vr(vP + r), vr(vS + r), sr(sC), vr(vMc)))
        for r in range(4):
            a("v_exp_f32 %s, %s" % (vr(vP + r), vr(vP + r)))
        a("s_nop 0")
        a("v_add_f32 %s, %s, %s" % (vr(vT), vr(vP), vr(vP + 1)))
        a("v_add_f32 %s, %s, %s" % (vr(vT2), vr(vP + 2), vr(vP + 3)))
        a("v_cvt_pk_bf16_f32 %s, %s, %s" % (vr(vPk), vr(vP), vr(vP + 1)))
        a("v_cvt_pk_bf16_f32 %s, %s, %s" % (vr(vPk + 1), vr(vP + 2), vr(vP + 3)))
        a("v_add_f32 %s, %s, %s" % (vr(vT), vr(vT), vr(vT2)))
        a("v_add_f32 %s, %s, %s" % (vr(vL), vr(vL), vr(vT)))
        wait_for(("V", k))
        vb = b + 16
        for c in range(4):
            for h in range(2):
                j = 2 * c + h
                sel = sSelHi if h else sSelLo
                a("v_perm_b32 %s, %s, %s, %s" % (vr(vVt + 2 * j), vr(vb + 4 + c), vr(vb + c), sr(sel)))
                a("v_perm_b32 %s, %s, %s, %s" % (vr(vVt + 2 * j + 1), vr(vb + 12 + c), vr(vb + 8 + c), sr(sel)))
        if k + D < NPG:
            loadV(k + D); seq.append(("V", k + D))
        else:
            a("s_nop 1")
        for j in range(8):
            a("v_mfma_f32_16x16x16_bf16 %s, %s, %s, %s" % (vr(vAcc + 4 * j, 4), vr(vVt + 2 * j, 2), vr(vPk, 2), vr(vAcc + 4 * j, 4)))
    a.label("L_epi")
    a("v_mov_b32 %s, %s" % (vr(vT2), vr(vL)))
    a("s_nop 1")
    a("v_permlane32_swap_b32 %s, %s" % (vr(vL), vr(vT2)))
    a("v_add_f32 %s, %s, %s" % (vr(vL), vr(vL), vr(vT2)))
    a("v_mov_b32 %s, %s" % (vr(vT2), vr(vL)))
    a("s_nop 1")
    a("v_permlane16_swap_b32 %s, %s" % (vr(vL), vr(vT2)))
    a("v_add_f32 %s, %s, %s" % (vr(vL), vr(vL), vr(vT2)))
    a("s_mul_i32 %s, %s, %d" % (sr(sTmp), sr(sWave), 64 * 80))
    a("v_mul_u32_u24 %s, 80, v0" % vr(vT))
    a("v_add_u32 %s, %s, %s" % (vr(vLds), sr(sTmp), vr(vT)))
    a("s_xor_b32 %s, %s, 4" % (sr(sTmp2), sr(sWave)))
    a("s_mul_i32 %s, %s, %d" % (sr(sTmp2), sr(sTmp2), 64 * 80))
    a("v_add_u32 %s, %s, %s" % (vr(vLds + 1), sr(sTmp2), vr(vT)))
    a("v_mov_b32 %s, %s" % (vr(vT2), vr(vL)))
    a("v_mov_b32 %s, %s" % (vr(94), vr(vMc)))
    a("v_mov_b32 %s, %s" % (vr(95), vr(vL)))
    a("s_nop 4")
    a("v_and_b32 %s, 15, v0" % vr(vT))
    a("v_lshrrev_b32 %s, 4, v0" % vr(vT2))
    a("v_lshlrev_b32 %s, 3, %s" % (vr(vSt), vr(vT)))
    a("v_lshl_add_u32 %s, %s, 1, %s" % (vr(vSt), vr(vT2), vr(vSt)))
    a("s_lshl_b32 %s, %s, 6" % (sr(sTmp), sr(sHead)))
    a("s_add_u32 %s, %s, %s" % (sr(sTmp), sr(sTmp), sr(sSub)))
    a("v_add_u32 %s, %s, %s" % (vr(vSt), sr(sTmp), vr(vSt)))
    a("v_mul_u32_u24 %s, %d, %s" % (vr(vSt), G, vr(vSt)))
    a("v_add_u32 %s, s2, %s" % (vr(vSt), vr(vSt)))
    a("v_lshlrev_b32 %s, 6, %s" % (vr(vSt), vr(vSt)))
    a("v_mov_b32 %s, 0x40000000" % vr(vAl))
    a("v_cmp_gt_u32 vcc, 8, %s" % vr(vT))
    a("s_lshl_b32 %s, %s, 3" % (sr(sTmp), sr(sHead)))
    a("s_nop 0")
    a("v_cndmask_b32 %s, %s, %s, vcc" % (vr(vSt), vr(vAl), vr(vSt)))
    a("v_add_u32 %s, %s, v0" % (vr(vMn), sr(sTmp)))
    a("v_mul_u32_u24 %s, %d, %s" % (vr(vMn), G, vr(vMn)))
    a("v_add_u32 %s, s2, %s" % (vr(vMn), vr(vMn)))
    a("v_lshlrev_b32 %s, 3, %s" % (vr(vMn), vr(vMn)))
    a("v_add_u32 %s, 0x%x, %s" % (vr(vMn), 32 * 8 * G * 64, vr(vMn)))
    a("v_cmp_gt_u32 vcc, 8, v0")
    a("s_nop 1")
    a("v_cndmask_b32 %s, %s, %s, vcc" % (vr(vMn), vr(vAl), vr(vMn)))
    a("s_cmp_eq_u32 %s, 1" % sr(sSub))
    a("s_cbranch_scc1 L_epi1")
    for s in range(2):
        if s == 1:
            a.label("L_epi1")
        own = vAcc + 16 * s
        oth = vAcc + 16 * (1 - s)
        for j in range(4):
            a("ds_write_b128 %s, %s offset:%d" % (vr(vLds), vr(oth + 4 * j, 4), 16 * j))
        a("ds_write_b64 %s, %s offset:64" % (vr(vLds), vr(94, 2)))
        a("s_waitcnt lgkmcnt(0)")
        a("s_barrier")
        for j in range(4):
            a("ds_read_b128 %s, %s offset:%d" % (vr(vVt + 4 * j, 4), vr(vLds + 1), 16 * j))
        a("ds_read_b64 %s, %s offset:64" % (vr(vP, 2), vr(vLds + 1)))
        a("s_waitcnt lgkmcnt(0)")
        a("v_max_f32 %s, %s, %s" % (vr(vMcn), vr(vMc), vr(vP)))
        a("v_max_f32 %s, 0xff7fffff, %s" % (vr(vT), vr(vMcn)))
        a("v_sub_f32 %s, %s, %s" % (vr(vAl), vr(vMc), vr(vT)))
        a("v_sub_f32 %s, %s, %s" % (vr(vT2), vr(vP), vr(vT)))
        a("v_exp_f32 %s, %s" % (vr(vAl), vr(vAl)))
        a("v_exp_f32 %s, %s" % (vr(vT2), vr(vT2)))
        a("s_nop 0")
        for r in range(16):
            a("v_mul_f32 %s, %s, %s" % (vr(own + r), vr(own + r), vr(vAl)))
            a("v_fmac_f32 %s, %s, %s" % (vr(own + r), vr(vVt + r), vr(vT2)))
        for j in range(4):
            a("buffer_store_dwordx4 %s, %s, %s, 0 offen offset:%d" % (vr(own + 4 * j, 4), vr(vSt), sr(sSW, 4), 16 * j))
        if s == 0:
            a("v_mul_f32 %s, %s, %s" % (vr(95), vr(vL), vr(vAl)))
            a("v_fmac_f32 %s, %s, %s" % (vr(95), vr(vP + 1), vr(vT2)))
            a("v_mov_b32 %s, %s" % (vr(94), vr(vMcn)))
            a("buffer_store_dwordx2 %s, %s, %s, 0 offen" % (vr(94, 2), vr(vMn), sr(sSW, 4)))
            a("s_endpgm")
    a.label("L_main_end")
    a("s_endpgm")

    a.raw(".globl fd_comb_kernel")
    a.raw(".p2align 8")
    a.raw(".type fd_comb_kernel,@function")
    a.label("fd_comb_kernel")
    NS = G // 16
    NA = G // 64
    a("s_cmp_ge_u32 s2, 256")
    a("s_cbranch_scc1 L_comb_end")
    a("s_load_dwordx2 s[4:5], s[0:1], 56")
    a("s_load_dwordx2 s[6:7], s[0:1], 40")
    a("s_mul_i32 s3, s2, %d" % (G * 64))
    a("v_lshlrev_b32 v1, 4, v0")
    a("v_add_u32 v1, s3, v1")
    a("s_lshr_b32 s16, s2, 3")
    a("s_mul_i32 s17, s16, %d" % (G * 8))
    a("s_add_u32 s17, s17, 0x%x" % (32 * 8 * G * 64))
    a("v_lshrrev_b32 v2, 2, v0")
    a("v_lshlrev_b32 v2, 3, v2")
    a("v_add_u32 v2, s17, v2")
    a("v_lshlrev_b32 v3, 3, v0")
    a("v_add_u32 v3, s17, v3")
    a("s_waitcnt lgkmcnt(0)")
    a("s_mov_b32 s8, s4")
    a("s_and_b32 s9, s5, 0xffff")
    a("s_mov_b32 s10, 0x10000000")
    a("s_mov_b32 s11, 0x00020000")
    a("s_mov_b32 s12, s6")
    a("s_and_b32 s13, s7, 0xffff")
    a("s_mov_b32 s14, 8192")
    a("s_mov_b32 s15, 0x00020000")
    vAll = 8
    vOwn = vAll + 2 * NA
    vO = (vOwn + 2 * NS + 3) // 4 * 4
    for k in range(NA):
        a("buffer_load_dwordx2 %s, v3, s[8:11], 0 offen offset:%d" % (vr(vAll + 2 * k, 2), 512 * k))
    for k in range(NS):
        a("buffer_load_dwordx2 %s, v2, s[8:11], 0 offen offset:%d" % (vr(vOwn + 2 * k, 2), 128 * k))
    for k in range(NS):
        if 1024 * k < 4096:
            a("buffer_load_dwordx4 %s, v1, s[8:11], 0 offen offset:%d" % (vr(vO + 4 * k, 4), 1024 * k))
        else:
            a("s_mov_b32 s18, %d" % (1024 * k // 4096 * 4096))
            a("buffer_load_dwordx4 %s, v1, s[8:11], s18 offen offset:%d" % (vr(vO + 4 * k, 4), 1024 * k % 4096))
    a("s_waitcnt vmcnt(%d)" % (2 * NS))
    a("v_mov_b32 v4, %s" % vr(vAll))
    for k in range(1, NA):
        a("v_max_f32 v4, v4, %s" % vr(vAll + 2 * k))
    def wave_reduce(reg, tmp, op):
        a("s_nop 1")
        a("%s_dpp %s, %s, %s quad_perm:[1,0,3,2] row_mask:0xf bank_mask:0xf" % (op, vr(reg), vr(reg), vr(reg)))
        a("s_nop 1")
        a("%s_dpp %s, %s, %s quad_perm:[2,3,0,1] row_mask:0xf bank_mask:0xf" % (op, vr(reg), vr(reg), vr(reg)))
        reduce_hi(reg, tmp, op)
    def reduce_hi(reg, tmp, op):
        a("s_nop 1")
        a("%s_dpp %s, %s, %s row_ror:4 row_mask:0xf bank_mask:0xf" % (op, vr(reg), vr(reg), vr(reg)))
        a("s_nop 1")
        a("%s_dpp %s, %s, %s row_ror:8 row_mask:0xf bank_mask:0xf" % (op, vr(reg), vr(reg), vr(reg)))
        a("v_mov_b32 %s, %s" % (vr(tmp), vr(reg)))
        a("s_nop 1")
        a("v_permlane16_swap_b32 %s, %s" % (vr(reg), vr(tmp)))
        a("%s %s, %s, %s" % (op, vr(reg), vr(reg), vr(tmp)))
        a("v_mov_b32 %s, %s" % (vr(tmp), vr(reg)))
        a("s_nop 1")
        a("v_permlane32_swap_b32 %s, %s" % (vr(reg), vr(tmp)))
        a("%s %s, %s, %s" % (op, vr(reg), vr(reg), vr(tmp)))
    wave_reduce(4, 5, "v_max_f32")
    a("v_mov_b32 v6, 0")
    for k in range(NA):
        a("v_sub_f32 v5, %s, v4" % vr(vAll + 2 * k))
        a("v_exp_f32 v5, v5")
        a("s_nop 0")
        a("v_fmac_f32 v6, v5, %s" % vr(vAll + 2 * k + 1))
    wave_reduce(6, 5, "v_add_f32")
    a("s_waitcnt vmcnt(%d)" % NS)
    for k in range(NS):
        a("v_sub_f32 %s, %s, v4" % (vr(vOwn + 2 * k), vr(vOwn + 2 * k)))
    for k in range(NS):
        a("v_exp_f32 %s, %s" % (vr(vOwn + 2 * k), vr(vOwn + 2 * k)))
    a("v_rcp_f32 v6, v6")
    vR = vO + 4 * NS
    for k in range(NS):
        a("s_waitcnt vmcnt(%d)" % (NS - 1 - k))
        for r in range(4):
            if k == 0:
                a("v_mul_f32 %s, %s, %s" % (vr(vR + r), vr(vOwn), vr(vO + r)))
            else:
                a("v_fmac_f32 %s, %s, %s" % (vr(vR + r), vr(vOwn + 2 * k), vr(vO + 4 * k + r)))
    for r in range(4):
        reduce_hi(vR + r, 5, "v_add_f32")
    for r in range(4):
        a("v_mul_f32 %s, %s, v6" % (vr(vR + r), vr(vR + r)))
    a("v_cvt_pk_bf16_f32 %s, %s, %s" % (vr(vR), vr(vR), vr(vR + 1)))
    a("v_cvt_pk_bf16_f32 %s, %s, %s" % (vr(vR + 2), vr(vR + 2), vr(vR + 3)))
    a("s_and_b32 s18, s2, 7")
    a("s_lshr_b32 s19, s18, 1")
    a("s_and_b32 s18, s18, 1")
    a("s_lshl_b32 s19, s19, 5")
    a("s_lshl_b32 s18, s18, 2")
    a("s_add_u32 s18, s18, s19")
    a("s_lshl_b32 s19, s16, 7")
    a("s_add_u32 s18, s18, s19")
    a("v_add_u32 v1, s18, v0")
    a("v_lshlrev_b32 v1, 1, v1")
    a("v_mov_b32 v2, 0x40000000")
    a("v_cmp_gt_u32 vcc, 4, v0")
    a("s_nop 1")
    a("v_cndmask_b32 v1, v2, v1, vcc")
    a("v_lshrrev_b32 %s, 16, %s" % (vr(vR + 1), vr(vR)))
    a("v_lshrrev_b32 %s, 16, %s" % (vr(vR + 3), vr(vR + 2)))
    for r in range(4):
        a("buffer_store_short %s, v1, s[12:15], 0 offen offset:%d" % (vr(vR + r), 16 * r))
    a.label("L_comb_end")
    a("s_endpgm")
    nv2 = vR + 4
    a.raw('.section .rodata,"a"')
    for nm, nv in (("fd_main_kernel", nvgpr), ("fd_comb_kernel", nv2)):
        a.raw(".p2align 6")
        a.raw(".amdhsa_kernel %s" % nm)
        a.raw("  .amdhsa_next_free_vgpr %d" % nv)
        a.raw("  .amdhsa_next_free_sgpr 64")
        a.raw("  .amdhsa_accum_offset %d" % ((nv + 3) // 4 * 4))
        a.raw("  .amdhsa_group_segment_fixed_size 0")
        a.raw("  .amdhsa_kernarg_size 64")
        a.raw("  .amdhsa_user_sgpr_count 2")
        a.raw("  .amdhsa_user_sgpr_kernarg_segment_ptr 1")
        a.raw("  .amdhsa_system_sgpr_workgroup_id_x 1")
        a.raw(".end_amdhsa_kernel")
    return a.text()

if __name__ == "__main__":
    out = sys.argv[1] if len(sys.argv) > 1 else "cdna_kernels/%s.s" % NAME
    kw = {}
    for x in sys.argv[2:]:
        k, v = x.split("=")
        kw[k] = int(v)
    open(out, "w").write(gen(**kw))
```

```python
import sys

NAME = "standalone__paged_block_table_kv_radixattention__decode"
HDR = open("cdna_kernels/%s.s.ref" % NAME).read().split("; Override launch geometry")[0]

class Asm:
    def __init__(self):
        self.lines = []
    def __call__(self, s):
        self.lines.append("    " + s)
    def label(self, s):
        self.lines.append(s + ":")
    def raw(self, s):
        self.lines.append(s)
    def text(self):
        return "\n".join(self.lines) + "\n"

def vr(a, n=1):
    return "v%d" % a if n == 1 else "v[%d:%d]" % (a, a + n - 1)
def sr(a, n=1):
    return "s%d" % a if n == 1 else "s[%d:%d]" % (a, a + n - 1)

def gen(G=256, D=4, nt=False, stamp=0):
    SUBS = 2
    NPG = 4096 // (G * SUBS)
    NTF = " nt" if nt else ""
    a = Asm()
    a.raw(HDR.rstrip())
    a.raw("; @launch kernel=fd_main_kernel grid=(%d,1,1) block=(512,1,1) lds=%d" % (G, 8 * 64 * 80))
    a.raw("; @launch kernel=fd_comb_kernel grid=(256,1,1) block=(64,1,1) lds=0")
    a.raw('.amdgcn_target "amdgcn-amd-amdhsa--gfx950"')
    a.raw(".text")
    a.raw(".globl fd_main_kernel")
    a.raw(".p2align 8")
    a.raw(".type fd_main_kernel,@function")
    a.label("fd_main_kernel")
    vKoff, vVoff, vTok, vLds = 1, 2, 3, 92
    vQ = 4
    vAcc = 20
    vS = 52
    vM, vMc, vL, vT, vT2, vMn, vMcn, vAl = 56, 57, 58, 59, 60, 61, 62, 63
    vP = 64
    vPk = 68
    vVt = 72
    vNinf = 88
    vSt = 89
    vSlot = 96
    nvgpr = vSlot + D * 32
    sQ, sK, sV, sBT = 4, 6, 8, 10
    sCtxP, sWsP = 12, 14
    sSK, sSV, sSQ, sSW = 16, 20, 24, 28
    sWave, sHead, sSub, sCtx, sNp, sLast, sRem = 32, 33, 34, 35, 36, 37, 38
    sOff = 40
    sC, sSelLo, sSelHi, sP0, sTmp, sTmp2 = 48, 49, 50, 51, 52, 53
    sBTb = 54
    stamps = []
    def st():
        if stamp:
            i = len(stamps); stamps.append(i)
            a("s_memrealtime s[%d:%d]" % (64 + 2 * i, 65 + 2 * i))
    a("s_cmp_ge_u32 s2, %d" % G)
    a("s_cbranch_scc1 L_main_end")
    st()
    a("s_load_dwordx8 s[4:11], s[0:1], 0")
    a("s_load_dwordx2 s[12:13], s[0:1], 32")
    a("s_load_dwordx2 s[14:15], s[0:1], 56")
    a("v_lshrrev_b32 v1, 6, v0")
    a("v_and_b32 v0, 63, v0")
    a("v_readfirstlane_b32 %s, v1" % sr(sWave))
    a("v_and_b32 %s, 15, v0" % vr(vT))
    a("v_lshrrev_b32 %s, 4, v0" % vr(vT2))
    a("s_and_b32 %s, %s, 3" % (sr(sHead), sr(sWave)))
    a("s_lshr_b32 %s, %s, 2" % (sr(sSub), sr(sWave)))
    a("s_lshl_b32 %s, %s, 8" % (sr(sTmp), sr(sHead)))
    a("s_mul_i32 %s, %s, %d" % (sr(sP0), sr(sSub), G))
    a("s_add_u32 %s, %s, s2" % (sr(sP0), sr(sP0)))
    a("v_lshlrev_b32 %s, 10, %s" % (vr(vKoff), vr(vT)))
    a("v_lshl_add_u32 %s, %s, 4, %s" % (vr(vKoff), vr(vT2), vr(vKoff)))
    a("v_add_u32 %s, %s, %s" % (vr(vKoff), sr(sTmp), vr(vKoff)))
    a("v_lshlrev_b32 %s, 12, %s" % (vr(vVoff), vr(vT2)))
    a("v_lshl_add_u32 %s, %s, 4, %s" % (vr(vVoff), vr(vT), vr(vVoff)))
    a("v_add_u32 %s, %s, %s" % (vr(vVoff), sr(sTmp), vr(vVoff)))
    a("v_lshlrev_b32 %s, 2, %s" % (vr(vTok), vr(vT2)))
    a("s_lshl_b32 %s, %s, 11" % (sr(sTmp2), sr(sHead)))
    a("v_lshlrev_b32 %s, 8, %s" % (vr(vSt), vr(vT)))
    a("v_lshl_add_u32 %s, %s, 4, %s" % (vr(vSt), vr(vT2), vr(vSt)))
    a("v_add_u32 %s, %s, %s" % (vr(vSt), sr(sTmp2), vr(vSt)))
    a("v_mov_b32 %s, 0x40000000" % vr(vAl))
    a("v_cmp_gt_u32 vcc, 8, %s" % vr(vT))
    a("s_mov_b32 %s, 0x3e0293ee" % sr(sC))
    a("s_mov_b32 %s, 0x05040100" % sr(sSelLo))
    a("v_cndmask_b32 %s, %s, %s, vcc" % (vr(vSt), vr(vAl), vr(vSt)))
    a("s_mov_b32 %s, 0x07060302" % sr(sSelHi))
    a("s_lshl_b32 %s, %s, 2" % (sr(sTmp), sr(sP0)))
    a("s_waitcnt lgkmcnt(0)")
    st()
    a("s_load_dword %s, %s, 0" % (sr(sCtx), sr(sCtxP, 2)))
    a("s_add_u32 %s, %s, %s" % (sr(sBTb), sr(sBT), sr(sTmp)))
    a("s_addc_u32 %s, %s, 0" % (sr(sBTb + 1), sr(sBT + 1)))
    for k in range(NPG):
        a("s_load_dword %s, %s, %d" % (sr(sOff + k), sr(sBTb, 2), k * SUBS * G * 4))
    for (srd, ptr, nbytes) in ((sSK, sK, 0x4000000), (sSV, sV, 0x4000000), (sSQ, sQ, 8192), (sSW, sWsP, 0x10000000)):
        a("s_mov_b32 %s, %s" % (sr(srd), sr(ptr)))
        a("s_and_b32 %s, %s, 0xffff" % (sr(srd + 1), sr(ptr + 1)))
        a("s_mov_b32 %s, 0x%x" % (sr(srd + 2), nbytes))
        a("s_mov_b32 %s, 0x00020000" % sr(srd + 3))
    for r in range(32):
        a("v_mov_b32 %s, 0" % vr(vAcc + r))
    a("v_mov_b32 %s, 0xff800000" % vr(vNinf))
    a("v_mov_b32 %s, 0xff800000" % vr(vM))
    a("v_mov_b32 %s, 0xff800000" % vr(vMc))
    a("v_mov_b32 %s, 0" % vr(vL))
    a("s_waitcnt lgkmcnt(0)")
    st()
    a("s_cmp_lt_i32 %s, 1" % sr(sCtx))
    a("s_cselect_b32 %s, 0, 8192" % sr(sSQ + 2))
    a("s_cselect_b32 %s, 0x10000, %s" % (sr(sCtx), sr(sCtx)))
    a("s_min_u32 %s, %s, 0x10000" % (sr(sCtx), sr(sCtx)))
    a("s_add_u32 %s, %s, 15" % (sr(sNp), sr(sCtx)))
    a("s_lshr_b32 %s, %s, 4" % (sr(sNp), sr(sNp)))
    a("s_sub_u32 %s, %s, 1" % (sr(sLast), sr(sNp)))
    a("s_lshl_b32 %s, %s, 4" % (sr(sTmp), sr(sLast)))
    a("s_sub_u32 %s, %s, %s" % (sr(sRem), sr(sCtx), sr(sTmp)))
    for j in range(4):
        a("buffer_load_dwordx4 %s, %s, %s, 0 offen offset:%d" % (vr(vQ + 4 * j, 4), vr(vSt), sr(sSQ, 4), 64 * j))
    for k in range(NPG):
        a("s_add_i32 %s, %s, 4096" % (sr(sTmp), sr(sOff + k)))
        a("s_cmp_lt_i32 %s, 0" % sr(sOff + k))
        a("s_cselect_b32 %s, %s, %s" % (sr(sOff + k), sr(sTmp), sr(sOff + k)))
        a("s_lshl_b32 %s, %s, 14" % (sr(sOff + k), sr(sOff + k)))
        a("s_add_u32 %s, %s, %d" % (sr(sTmp), sr(sP0), k * SUBS * G))
        a("s_cmp_lt_u32 %s, %s" % (sr(sTmp), sr(sNp)))
        a("s_cselect_b32 %s, %s, 0x80000000" % (sr(sOff + k), sr(sOff + k)))

    def loadK(k):
        b = vSlot + (k % D) * 32
        for j in range(4):
            a("buffer_load_dwordx4 %s, %s, %s, %s offen offset:%d%s" % (vr(b + 4 * j, 4), vr(vKoff), sr(sSK, 4), sr(sOff + k), 64 * j, NTF))
    def loadV(k):
        b = vSlot + (k % D) * 32 + 16
        for r in range(4):
            a("buffer_load_dwordx4 %s, %s, %s, %s offen offset:%d%s" % (vr(b + 4 * r, 4), vr(vVoff), sr(sSV, 4), sr(sOff + k), 1024 * r, NTF))
    seq = []
    for k in range(min(D, NPG)):
        loadK(k); seq.append(("K", k))
        loadV(k); seq.append(("V", k))
    def wait_for(item):
        idx = seq.index(item)
        n = (len(seq) - 1 - idx) * 4
        a("s_waitcnt vmcnt(%d)" % n)

    for k in range(NPG):
        b = vSlot + (k % D) * 32
        a("s_add_u32 %s, %s, %d" % (sr(sTmp), sr(sP0), k * SUBS * G))
        a("s_cmp_ge_u32 %s, %s" % (sr(sTmp), sr(sNp)))
        a("s_cbranch_scc1 L_epi")
        wait_for(("K", k))
        if k in (0, 1, 3, 5): st()
        for j in range(4):
            c = "0" if j == 0 else vr(vS, 4)
            a("v_mfma_f32_16x16x32_bf16 %s, %s, %s, %s" % (vr(vS, 4), vr(b + 4 * j, 4), vr(vQ + 4 * j, 4), c))
        if k + D < NPG:
            loadK(k + D); seq.append(("K", k + D))
            a("s_nop 3")
        else:
            a("s_nop 7")
        a("s_cmp_lg_u32 %s, %s" % (sr(sTmp), sr(sLast)))
        a("s_cbranch_scc1 L_nomask%d" % k)
        for r in range(4):
            a("v_add_u32 %s, %d, %s" % (vr(vT), r, vr(vTok)))
            a("v_cmp_gt_u32 vcc, %s, %s" % (sr(sRem), vr(vT)))
            a("s_nop 1")
            a("v_cndmask_b32 %s, %s, %s, vcc" % (vr(vS + r), vr(vNinf), vr(vS + r)))
        a.label("L_nomask%d" % k)
        a("v_max3_f32 %s, %s, %s, %s" % (vr(vT), vr(vS), vr(vS + 1), vr(vS + 2)))
        a("v_max3_f32 %s, %s, %s, %s" % (vr(vT), vr(vT), vr(vS + 3), vr(vM)))
        a("v_mov_b32 %s, %s" % (vr(vT2), vr(vT)))
        a("s_nop 1")
        a("v_permlane32_swap_b32 %s, %s" % (vr(vT), vr(vT2)))
        a("v_max_f32 %s, %s, %s" % (vr(vT), vr(vT), vr(vT2)))
        a("v_mov_b32 %s, %s" % (vr(vT2), vr(vT)))
        a("s_nop 1")
        a("v_permlane16_swap_b32 %s, %s" % (vr(vT), vr(vT2)))
        a("v_max_f32 %s, %s, %s" % (vr(vMn), vr(vT), vr(vT2)))
        a("v_cmp_gt_f32 vcc, %s, %s" % (vr(vMn), vr(vM)))
        a("v_mul_f32 %s, %s, %s" % (vr(vMcn), sr(sC), vr(vMn)))
        a("s_cbranch_vccz L_noresc%d" % k)
        a("v_sub_f32 %s, %s, %s" % (vr(vAl), vr(vMc), vr(vMcn)))
        a("v_exp_f32 %s, %s" % (vr(vAl), vr(vAl)))
        a("v_mov_b32 %s, %s" % (vr(vM), vr(vMn)))
        a("v_mov_b32 %s, %s" % (vr(vMc), vr(vMcn)))
        a("v_mul_f32 %s, %s, %s" % (vr(vL), vr(vL), vr(vAl)))
        for r in range(32):
            a("v_mul_f32 %s, %s, %s" % (vr(vAcc + r), vr(vAcc + r), vr(vAl)))
        a.label("L_noresc%d" % k)
        for r in range(4):
            a("v_fma_f32 %s, %s, %s, -%s" % (vr(vP + r), vr(vS + r), sr(sC), vr(vMc)))
        for r in range(4):
            a("v_exp_f32 %s, %s" % (vr(vP + r), vr(vP + r)))
        a("s_nop 0")
        a("v_add_f32 %s, %s, %s" % (vr(vT), vr(vP), vr(vP + 1)))
        a("v_add_f32 %s, %s, %s" % (vr(vT2), vr(vP + 2), vr(vP + 3)))
        a("v_cvt_pk_bf16_f32 %s, %s, %s" % (vr(vPk), vr(vP), vr(vP + 1)))
        a("v_cvt_pk_bf16_f32 %s, %s, %s" % (vr(vPk + 1), vr(vP + 2), vr(vP + 3)))
        a("v_add_f32 %s, %s, %s" % (vr(vT), vr(vT), vr(vT2)))
        a("v_add_f32 %s, %s, %s" % (vr(vL), vr(vL), vr(vT)))
        wait_for(("V", k))
        vb = b + 16
        for c in range(4):
            for h in range(2):
                j = 2 * c + h
                sel = sSelHi if h else sSelLo
                a("v_perm_b32 %s, %s, %s, %s" % (vr(vVt + 2 * j), vr(vb + 4 + c), vr(vb + c), sr(sel)))
                a("v_perm_b32 %s, %s, %s, %s" % (vr(vVt + 2 * j + 1), vr(vb + 12 + c), vr(vb + 8 + c), sr(sel)))
        if k + D < NPG:
            loadV(k + D); seq.append(("V", k + D))
        else:
            a("s_nop 1")
        for j in range(8):
            a("v_mfma_f32_16x16x16_bf16 %s, %s, %s, %s" % (vr(vAcc + 4 * j, 4), vr(vVt + 2 * j, 2), vr(vPk, 2), vr(vAcc + 4 * j, 4)))
    a.label("L_epi")
    st()
    if stamp:
        a("s_load_dwordx2 s[96:97], s[0:1], 48")
        a("s_waitcnt lgkmcnt(0)")
        a("s_mov_b32 s92, s96")
        a("s_and_b32 s93, s97, 0xffff")
        a("s_mov_b32 s94, 256")
        a("s_mov_b32 s95, 0x00020000")
        a("s_cmp_lg_u32 %s, 0" % sr(sWave))
        a("s_cbranch_scc1 L_nost")
        a("s_cmp_eq_u32 s2, 0")
        a("s_cselect_b32 s98, 0, 32")
        a("s_cbranch_scc1 L_dost")
        a("s_cmp_lg_u32 s2, 200")
        a("s_cbranch_scc1 L_nost")
        a.label("L_dost")
        a("v_mov_b32 v90, 0")
        for i in range(len(stamps)):
            a("v_mov_b32 v91, s%d" % (64 + 2 * i))
            a("buffer_store_dword v91, v90, s[92:95], s98 offen offset:%d" % (4 * i))
            a("s_nop 1")
        a.label("L_nost")
    a("v_mov_b32 %s, %s" % (vr(vT2), vr(vL)))
    a("s_nop 1")
    a("v_permlane32_swap_b32 %s, %s" % (vr(vL), vr(vT2)))
    a("v_add_f32 %s, %s, %s" % (vr(vL), vr(vL), vr(vT2)))
    a("v_mov_b32 %s, %s" % (vr(vT2), vr(vL)))
    a("s_nop 1")
    a("v_permlane16_swap_b32 %s, %s" % (vr(vL), vr(vT2)))
    a("v_add_f32 %s, %s, %s" % (vr(vL), vr(vL), vr(vT2)))
    a("s_mul_i32 %s, %s, %d" % (sr(sTmp), sr(sWave), 64 * 80))
    a("v_mul_u32_u24 %s, 80, v0" % vr(vT))
    a("v_add_u32 %s, %s, %s" % (vr(vLds), sr(sTmp), vr(vT)))
    a("s_xor_b32 %s, %s, 4" % (sr(sTmp2), sr(sWave)))
    a("s_mul_i32 %s, %s, %d" % (sr(sTmp2), sr(sTmp2), 64 * 80))
    a("v_add_u32 %s, %s, %s" % (vr(vLds + 1), sr(sTmp2), vr(vT)))
    a("v_mov_b32 %s, %s" % (vr(vT2), vr(vL)))
    a("v_mov_b32 %s, %s" % (vr(94), vr(vMc)))
    a("v_mov_b32 %s, %s" % (vr(95), vr(vL)))
    a("s_nop 4")
    a("v_and_b32 %s, 15, v0" % vr(vT))
    a("v_lshrrev_b32 %s, 4, v0" % vr(vT2))
    a("v_lshlrev_b32 %s, 3, %s" % (vr(vSt), vr(vT)))
    a("v_lshl_add_u32 %s, %s, 1, %s" % (vr(vSt), vr(vT2), vr(vSt)))
    a("s_lshl_b32 %s, %s, 6" % (sr(sTmp), sr(sHead)))
    a("s_add_u32 %s, %s, %s" % (sr(sTmp), sr(sTmp), sr(sSub)))
    a("v_add_u32 %s, %s, %s" % (vr(vSt), sr(sTmp), vr(vSt)))
    a("v_mul_u32_u24 %s, %d, %s" % (vr(vSt), G, vr(vSt)))
    a("v_add_u32 %s, s2, %s" % (vr(vSt), vr(vSt)))
    a("v_lshlrev_b32 %s, 6, %s" % (vr(vSt), vr(vSt)))
    a("v_mov_b32 %s, 0x40000000" % vr(vAl))
    a("v_cmp_gt_u32 vcc, 8, %s" % vr(vT))
    a("s_lshl_b32 %s, %s, 3" % (sr(sTmp), sr(sHead)))
    a("s_nop 0")
    a("v_cndmask_b32 %s, %s, %s, vcc" % (vr(vSt), vr(vAl), vr(vSt)))
    a("v_add_u32 %s, %s, v0" % (vr(vMn), sr(sTmp)))
    a("v_mul_u32_u24 %s, %d, %s" % (vr(vMn), G, vr(vMn)))
    a("v_add_u32 %s, s2, %s" % (vr(vMn), vr(vMn)))
    a("v_lshlrev_b32 %s, 3, %s" % (vr(vMn), vr(vMn)))
    a("v_add_u32 %s, 0x%x, %s" % (vr(vMn), 32 * 8 * G * 64, vr(vMn)))
    a("v_cmp_gt_u32 vcc, 8, v0")
    a("s_nop 1")
    a("v_cndmask_b32 %s, %s, %s, vcc" % (vr(vMn), vr(vAl), vr(vMn)))
    a("s_cmp_eq_u32 %s, 1" % sr(sSub))
    a("s_cbranch_scc1 L_epi1")
    for s in range(2):
        if s == 1:
            a.label("L_epi1")
        own = vAcc + 16 * s
        oth = vAcc + 16 * (1 - s)
        for j in range(4):
            a("ds_write_b128 %s, %s offset:%d" % (vr(vLds), vr(oth + 4 * j, 4), 16 * j))
        a("ds_write_b64 %s, %s offset:64" % (vr(vLds), vr(94, 2)))
        a("s_waitcnt lgkmcnt(0)")
        a("s_barrier")
        for j in range(4):
            a("ds_read_b128 %s, %s offset:%d" % (vr(vVt + 4 * j, 4), vr(vLds + 1), 16 * j))
        a("ds_read_b64 %s, %s offset:64" % (vr(vP, 2), vr(vLds + 1)))
        a("s_waitcnt lgkmcnt(0)")
        a("v_max_f32 %s, %s, %s" % (vr(vMcn), vr(vMc), vr(vP)))
        a("v_max_f32 %s, 0xff7fffff, %s" % (vr(vT), vr(vMcn)))
        a("v_sub_f32 %s, %s, %s" % (vr(vAl), vr(vMc), vr(vT)))
        a("v_sub_f32 %s, %s, %s" % (vr(vT2), vr(vP), vr(vT)))
        a("v_exp_f32 %s, %s" % (vr(vAl), vr(vAl)))
        a("v_exp_f32 %s, %s" % (vr(vT2), vr(vT2)))
        a("s_nop 0")
        for r in range(16):
            a("v_mul_f32 %s, %s, %s" % (vr(own + r), vr(own + r), vr(vAl)))
            a("v_fmac_f32 %s, %s, %s" % (vr(own + r), vr(vVt + r), vr(vT2)))
        for j in range(4):
            a("buffer_store_dwordx4 %s, %s, %s, 0 offen offset:%d" % (vr(own + 4 * j, 4), vr(vSt), sr(sSW, 4), 16 * j))
        if s == 0:
            a("v_mul_f32 %s, %s, %s" % (vr(95), vr(vL), vr(vAl)))
            a("v_fmac_f32 %s, %s, %s" % (vr(95), vr(vP + 1), vr(vT2)))
            a("v_mov_b32 %s, %s" % (vr(94), vr(vMcn)))
            a("buffer_store_dwordx2 %s, %s, %s, 0 offen" % (vr(94, 2), vr(vMn), sr(sSW, 4)))
            a("s_endpgm")
    a.label("L_main_end")
    a("s_endpgm")

    a.raw(".globl fd_comb_kernel")
    a.raw(".p2align 8")
    a.raw(".type fd_comb_kernel,@function")
    a.label("fd_comb_kernel")
    NS = G // 16
    NA = G // 64
    a("s_cmp_ge_u32 s2, 256")
    a("s_cbranch_scc1 L_comb_end")
    a("s_load_dwordx2 s[4:5], s[0:1], 56")
    a("s_load_dwordx2 s[6:7], s[0:1], 40")
    a("s_mul_i32 s3, s2, %d" % (G * 64))
    a("v_lshlrev_b32 v1, 4, v0")
    a("v_add_u32 v1, s3, v1")
    a("s_lshr_b32 s16, s2, 3")
    a("s_mul_i32 s17, s16, %d" % (G * 8))
    a("s_add_u32 s17, s17, 0x%x" % (32 * 8 * G * 64))
    a("v_lshrrev_b32 v2, 2, v0")
    a("v_lshlrev_b32 v2, 3, v2")
    a("v_add_u32 v2, s17, v2")
    a("v_lshlrev_b32 v3, 3, v0")
    a("v_add_u32 v3, s17, v3")
    a("s_waitcnt lgkmcnt(0)")
    a("s_mov_b32 s8, s4")
    a("s_and_b32 s9, s5, 0xffff")
    a("s_mov_b32 s10, 0x10000000")
    a("s_mov_b32 s11, 0x00020000")
    a("s_mov_b32 s12, s6")
    a("s_and_b32 s13, s7, 0xffff")
    a("s_mov_b32 s14, 8192")
    a("s_mov_b32 s15, 0x00020000")
    vAll = 8
    vOwn = vAll + 2 * NA
    vO = (vOwn + 2 * NS + 3) // 4 * 4
    for k in range(NA):
        a("buffer_load_dwordx2 %s, v3, s[8:11], 0 offen offset:%d" % (vr(vAll + 2 * k, 2), 512 * k))
    for k in range(NS):
        a("buffer_load_dwordx2 %s, v2, s[8:11], 0 offen offset:%d" % (vr(vOwn + 2 * k, 2), 128 * k))
    for k in range(NS):
        if 1024 * k < 4096:
            a("buffer_load_dwordx4 %s, v1, s[8:11], 0 offen offset:%d" % (vr(vO + 4 * k, 4), 1024 * k))
        else:
            a("s_mov_b32 s18, %d" % (1024 * k // 4096 * 4096))
            a("buffer_load_dwordx4 %s, v1, s[8:11], s18 offen offset:%d" % (vr(vO + 4 * k, 4), 1024 * k % 4096))
    a("s_waitcnt vmcnt(%d)" % (2 * NS))
    a("v_mov_b32 v4, %s" % vr(vAll))
    for k in range(1, NA):
        a("v_max_f32 v4, v4, %s" % vr(vAll + 2 * k))
    def wave_reduce(reg, tmp, op):
        a("s_nop 1")
        a("%s_dpp %s, %s, %s quad_perm:[1,0,3,2] row_mask:0xf bank_mask:0xf" % (op, vr(reg), vr(reg), vr(reg)))
        a("s_nop 1")
        a("%s_dpp %s, %s, %s quad_perm:[2,3,0,1] row_mask:0xf bank_mask:0xf" % (op, vr(reg), vr(reg), vr(reg)))
        reduce_hi(reg, tmp, op)
    def reduce_hi(reg, tmp, op):
        a("s_nop 1")
        a("%s_dpp %s, %s, %s row_ror:4 row_mask:0xf bank_mask:0xf" % (op, vr(reg), vr(reg), vr(reg)))
        a("s_nop 1")
        a("%s_dpp %s, %s, %s row_ror:8 row_mask:0xf bank_mask:0xf" % (op, vr(reg), vr(reg), vr(reg)))
        a("v_mov_b32 %s, %s" % (vr(tmp), vr(reg)))
        a("s_nop 1")
        a("v_permlane16_swap_b32 %s, %s" % (vr(reg), vr(tmp)))
        a("%s %s, %s, %s" % (op, vr(reg), vr(reg), vr(tmp)))
        a("v_mov_b32 %s, %s" % (vr(tmp), vr(reg)))
        a("s_nop 1")
        a("v_permlane32_swap_b32 %s, %s" % (vr(reg), vr(tmp)))
        a("%s %s, %s, %s" % (op, vr(reg), vr(reg), vr(tmp)))
    wave_reduce(4, 5, "v_max_f32")
    a("v_mov_b32 v6, 0")
    for k in range(NA):
        a("v_sub_f32 v5, %s, v4" % vr(vAll + 2 * k))
        a("v_exp_f32 v5, v5")
        a("s_nop 0")
        a("v_fmac_f32 v6, v5, %s" % vr(vAll + 2 * k + 1))
    wave_reduce(6, 5, "v_add_f32")
    a("s_waitcnt vmcnt(%d)" % NS)
    for k in range(NS):
        a("v_sub_f32 %s, %s, v4" % (vr(vOwn + 2 * k), vr(vOwn + 2 * k)))
    for k in range(NS):
        a("v_exp_f32 %s, %s" % (vr(vOwn + 2 * k), vr(vOwn + 2 * k)))
    a("v_rcp_f32 v6, v6")
    vR = vO + 4 * NS
    for k in range(NS):
        a("s_waitcnt vmcnt(%d)" % (NS - 1 - k))
        for r in range(4):
            if k == 0:
                a("v_mul_f32 %s, %s, %s" % (vr(vR + r), vr(vOwn), vr(vO + r)))
            else:
                a("v_fmac_f32 %s, %s, %s" % (vr(vR + r), vr(vOwn + 2 * k), vr(vO + 4 * k + r)))
    for r in range(4):
        reduce_hi(vR + r, 5, "v_add_f32")
    for r in range(4):
        a("v_mul_f32 %s, %s, v6" % (vr(vR + r), vr(vR + r)))
    a("v_cvt_pk_bf16_f32 %s, %s, %s" % (vr(vR), vr(vR), vr(vR + 1)))
    a("v_cvt_pk_bf16_f32 %s, %s, %s" % (vr(vR + 2), vr(vR + 2), vr(vR + 3)))
    a("s_and_b32 s18, s2, 7")
    a("s_lshr_b32 s19, s18, 1")
    a("s_and_b32 s18, s18, 1")
    a("s_lshl_b32 s19, s19, 5")
    a("s_lshl_b32 s18, s18, 2")
    a("s_add_u32 s18, s18, s19")
    a("s_lshl_b32 s19, s16, 7")
    a("s_add_u32 s18, s18, s19")
    a("v_add_u32 v1, s18, v0")
    a("v_lshlrev_b32 v1, 1, v1")
    a("v_mov_b32 v2, 0x40000000")
    a("v_cmp_gt_u32 vcc, 4, v0")
    a("s_nop 1")
    a("v_cndmask_b32 v1, v2, v1, vcc")
    a("v_lshrrev_b32 %s, 16, %s" % (vr(vR + 1), vr(vR)))
    a("v_lshrrev_b32 %s, 16, %s" % (vr(vR + 3), vr(vR + 2)))
    for r in range(4):
        a("buffer_store_short %s, v1, s[12:15], 0 offen offset:%d" % (vr(vR + r), 16 * r))
    a.label("L_comb_end")
    a("s_endpgm")
    nv2 = vR + 4
    a.raw('.section .rodata,"a"')
    for nm, nv in (("fd_main_kernel", nvgpr), ("fd_comb_kernel", nv2)):
        a.raw(".p2align 6")
        a.raw(".amdhsa_kernel %s" % nm)
        a.raw("  .amdhsa_next_free_vgpr %d" % nv)
        a.raw("  .amdhsa_next_free_sgpr 102")
        a.raw("  .amdhsa_accum_offset %d" % ((nv + 3) // 4 * 4))
        a.raw("  .amdhsa_group_segment_fixed_size 0")
        a.raw("  .amdhsa_kernarg_size 64")
        a.raw("  .amdhsa_user_sgpr_count 2")
        a.raw("  .amdhsa_user_sgpr_kernarg_segment_ptr 1")
        a.raw("  .amdhsa_system_sgpr_workgroup_id_x 1")
        a.raw(".end_amdhsa_kernel")
    return a.text()

if __name__ == "__main__":
    out = sys.argv[1] if len(sys.argv) > 1 else "cdna_kernels/%s.s" % NAME
    kw = {}
    for x in sys.argv[2:]:
        k, v = x.split("=")
        kw[k] = int(v)
    open(out, "w").write(gen(**kw))
```

```python
import sys

NAME = "standalone__paged_block_table_kv_radixattention__decode"
HDR = open("cdna_kernels/%s.s.ref" % NAME).read().split("; Override launch geometry")[0]

class Asm:
    def __init__(self):
        self.lines = []
    def __call__(self, s):
        self.lines.append("    " + s)
    def label(self, s):
        self.lines.append(s + ":")
    def raw(self, s):
        self.lines.append(s)
    def text(self):
        return "\n".join(self.lines) + "\n"

def vr(a, n=1):
    return "v%d" % a if n == 1 else "v[%d:%d]" % (a, a + n - 1)
def sr(a, n=1):
    return "s%d" % a if n == 1 else "s[%d:%d]" % (a, a + n - 1)

def gen(G=256, D=4, nt=False, stamp=0):
    SUBS = 2
    NPG = 4096 // (G * SUBS)
    NTF = " nt" if nt else ""
    a = Asm()
    a.raw(HDR.rstrip())
    a.raw("; @launch kernel=fd_main_kernel grid=(%d,1,1) block=(512,1,1) lds=%d" % (G, 8 * 64 * 80))
    a.raw("; @launch kernel=fd_comb_kernel grid=(256,1,1) block=(64,1,1) lds=0")
    a.raw('.amdgcn_target "amdgcn-amd-amdhsa--gfx950"')
    a.raw(".text")
    a.raw(".globl fd_main_kernel")
    a.raw(".p2align 8")
    a.raw(".type fd_main_kernel,@function")
    a.label("fd_main_kernel")
    vKoff, vVoff, vTok, vLds = 1, 2, 3, 92
    vQ = 4
    vAcc = 20
    vS = 52
    vM, vMc, vL, vT, vT2, vMn, vMcn, vAl = 56, 57, 58, 59, 60, 61, 62, 63
    vP = 64
    vPk = 68
    vVt = 72
    vNinf = 88
    vSt = 89
    vSlot = 96
    nvgpr = vSlot + D * 32
    sQ, sK, sV, sBT = 4, 6, 8, 10
    sCtxP, sWsP = 12, 14
    sSK, sSV, sSQ, sSW = 16, 20, 24, 28
    sWave, sHead, sSub, sCtx, sNp, sLast, sRem = 32, 33, 34, 35, 36, 37, 38
    sOff = 40
    sC, sSelLo, sSelHi, sP0, sTmp, sTmp2 = 48, 49, 50, 51, 52, 53
    sBTb = 54
    stamps = []
    def st():
        if stamp:
            i = len(stamps); stamps.append(i)
            a("s_memrealtime s[%d:%d]" % (64 + 2 * i, 65 + 2 * i))
    a("s_cmp_ge_u32 s2, %d" % G)
    a("s_cbranch_scc1 L_main_end")
    st()
    a("s_load_dwordx8 s[4:11], s[0:1], 0")
    a("s_load_dwordx2 s[12:13], s[0:1], 32")
    a("s_load_dwordx2 s[14:15], s[0:1], 56")
    a("v_lshrrev_b32 v1, 6, v0")
    a("v_and_b32 v0, 63, v0")
    a("v_readfirstlane_b32 %s, v1" % sr(sWave))
    a("v_and_b32 %s, 15, v0" % vr(vT))
    a("v_lshrrev_b32 %s, 4, v0" % vr(vT2))
    a("s_and_b32 %s, %s, 3" % (sr(sHead), sr(sWave)))
    a("s_lshr_b32 %s, %s, 2" % (sr(sSub), sr(sWave)))
    a("s_lshl_b32 %s, %s, 8" % (sr(sTmp), sr(sHead)))
    a("s_mul_i32 %s, %s, %d" % (sr(sP0), sr(sSub), G))
    a("s_add_u32 %s, %s, s2" % (sr(sP0), sr(sP0)))
    a("v_lshlrev_b32 %s, 10, %s" % (vr(vKoff), vr(vT)))
    a("v_lshl_add_u32 %s, %s, 4, %s" % (vr(vKoff), vr(vT2), vr(vKoff)))
    a("v_add_u32 %s, %s, %s" % (vr(vKoff), sr(sTmp), vr(vKoff)))
    a("v_lshlrev_b32 %s, 12, %s" % (vr(vVoff), vr(vT2)))
    a("v_lshl_add_u32 %s, %s, 4, %s" % (vr(vVoff), vr(vT), vr(vVoff)))
    a("v_add_u32 %s, %s, %s" % (vr(vVoff), sr(sTmp), vr(vVoff)))
    a("v_lshlrev_b32 %s, 2, %s" % (vr(vTok), vr(vT2)))
    a("s_lshl_b32 %s, %s, 11" % (sr(sTmp2), sr(sHead)))
    a("v_lshlrev_b32 %s, 8, %s" % (vr(vSt), vr(vT)))
    a("v_lshl_add_u32 %s, %s, 4, %s" % (vr(vSt), vr(vT2), vr(vSt)))
    a("v_add_u32 %s, %s, %s" % (vr(vSt), sr(sTmp2), vr(vSt)))
    a("v_mov_b32 %s, 0x40000000" % vr(vAl))
    a("v_cmp_gt_u32 vcc, 8, %s" % vr(vT))
    a("s_mov_b32 %s, 0x3e0293ee" % sr(sC))
    a("s_mov_b32 %s, 0x05040100" % sr(sSelLo))
    a("v_cndmask_b32 %s, %s, %s, vcc" % (vr(vSt), vr(vAl), vr(vSt)))
    a("s_mov_b32 %s, 0x07060302" % sr(sSelHi))
    a("s_lshl_b32 %s, %s, 2" % (sr(sTmp), sr(sP0)))
    a("s_waitcnt lgkmcnt(0)")
    st()
    a("s_load_dword %s, %s, 0" % (sr(sCtx), sr(sCtxP, 2)))
    a("s_add_u32 %s, %s, %s" % (sr(sBTb), sr(sBT), sr(sTmp)))
    a("s_addc_u32 %s, %s, 0" % (sr(sBTb + 1), sr(sBT + 1)))
    for k in range(NPG):
        a("s_load_dword %s, %s, %d" % (sr(sOff + k), sr(sBTb, 2), k * SUBS * G * 4))
    for (srd, ptr, nbytes) in ((sSK, sK, 0x4000000), (sSV, sV, 0x4000000), (sSQ, sQ, 8192), (sSW, sWsP, 0x10000000)):
        a("s_mov_b32 %s, %s" % (sr(srd), sr(ptr)))
        a("s_and_b32 %s, %s, 0xffff" % (sr(srd + 1), sr(ptr + 1)))
        a("s_mov_b32 %s, 0x%x" % (sr(srd + 2), nbytes))
        a("s_mov_b32 %s, 0x00020000" % sr(srd + 3))
    for r in range(32):
        a("v_mov_b32 %s, 0" % vr(vAcc + r))
    a("v_mov_b32 %s, 0xff800000" % vr(vNinf))
    a("v_mov_b32 %s, 0xff800000" % vr(vM))
    a("v_mov_b32 %s, 0xff800000" % vr(vMc))
    a("v_mov_b32 %s, 0" % vr(vL))
    a("s_waitcnt lgkmcnt(0)")
    st()
    a("s_cmp_lt_i32 %s, 1" % sr(sCtx))
    a("s_cselect_b32 %s, 0, 8192" % sr(sSQ + 2))
    a("s_cselect_b32 %s, 0x10000, %s" % (sr(sCtx), sr(sCtx)))
    a("s_min_u32 %s, %s, 0x10000" % (sr(sCtx), sr(sCtx)))
    a("s_add_u32 %s, %s, 15" % (sr(sNp), sr(sCtx)))
    a("s_lshr_b32 %s, %s, 4" % (sr(sNp), sr(sNp)))
    a("s_sub_u32 %s, %s, 1" % (sr(sLast), sr(sNp)))
    a("s_lshl_b32 %s, %s, 4" % (sr(sTmp), sr(sLast)))
    a("s_sub_u32 %s, %s, %s" % (sr(sRem), sr(sCtx), sr(sTmp)))
    for j in range(4):
        a("buffer_load_dwordx4 %s, %s, %s, 0 offen offset:%d" % (vr(vQ + 4 * j, 4), vr(vSt), sr(sSQ, 4), 64 * j))
    for k in range(NPG):
        a("s_add_i32 %s, %s, 4096" % (sr(sTmp), sr(sOff + k)))
        a("s_cmp_lt_i32 %s, 0" % sr(sOff + k))
        a("s_cselect_b32 %s, %s, %s" % (sr(sOff + k), sr(sTmp), sr(sOff + k)))
        a("s_lshl_b32 %s, %s, 14" % (sr(sOff + k), sr(sOff + k)))
        a("s_add_u32 %s, %s, %d" % (sr(sTmp), sr(sP0), k * SUBS * G))
        a("s_cmp_lt_u32 %s, %s" % (sr(sTmp), sr(sNp)))
        a("s_cselect_b32 %s, %s, 0x80000000" % (sr(sOff + k), sr(sOff + k)))

    def loadK(k):
        b = vSlot + (k % D) * 32
        for j in range(4):
            a("buffer_load_dwordx4 %s, %s, %s, %s offen offset:%d%s" % (vr(b + 4 * j, 4), vr(vKoff), sr(sSK, 4), sr(sOff + k), 64 * j, NTF))
    def loadV(k):
        b = vSlot + (k % D) * 32 + 16
        for r in range(4):
            a("buffer_load_dwordx4 %s, %s, %s, %s offen offset:%d%s" % (vr(b + 4 * r, 4), vr(vVoff), sr(sSV, 4), sr(sOff + k), 1024 * r, NTF))
    seq = []
    for k in range(min(D, NPG)):
        loadK(k); seq.append(("K", k))
        loadV(k); seq.append(("V", k))
    def wait_for(item):
        idx = seq.index(item)
        n = (len(seq) - 1 - idx) * 4
        a("s_waitcnt vmcnt(%d)" % n)

    for k in range(NPG):
        b = vSlot + (k % D) * 32
        a("s_add_u32 %s, %s, %d" % (sr(sTmp), sr(sP0), k * SUBS * G))
        a("s_cmp_ge_u32 %s, %s" % (sr(sTmp), sr(sNp)))
        a("s_cbranch_scc1 L_epi")
        wait_for(("K", k))
        if k in (0, 1, 3, 5): st()
        for j in range(4):
            c = "0" if j == 0 else vr(vS, 4)
            a("v_mfma_f32_16x16x32_bf16 %s, %s, %s, %s" % (vr(vS, 4), vr(b + 4 * j, 4), vr(vQ + 4 * j, 4), c))
        if k + D < NPG:
            loadK(k + D); seq.append(("K", k + D))
            a("s_nop 3")
        else:
            a("s_nop 7")
        a("s_cmp_lg_u32 %s, %s" % (sr(sTmp), sr(sLast)))
        a("s_cbranch_scc1 L_nomask%d" % k)
        for r in range(4):
            a("v_add_u32 %s, %d, %s" % (vr(vT), r, vr(vTok)))
            a("v_cmp_gt_u32 vcc, %s, %s" % (sr(sRem), vr(vT)))
            a("s_nop 1")
            a("v_cndmask_b32 %s, %s, %s, vcc" % (vr(vS + r), vr(vNinf), vr(vS + r)))
        a.label("L_nomask%d" % k)
        a("v_max3_f32 %s, %s, %s, %s" % (vr(vT), vr(vS), vr(vS + 1), vr(vS + 2)))
        a("v_max3_f32 %s, %s, %s, %s" % (vr(vT), vr(vT), vr(vS + 3), vr(vM)))
        a("v_mov_b32 %s, %s" % (vr(vT2), vr(vT)))
        a("s_nop 1")
        a("v_permlane32_swap_b32 %s, %s" % (vr(vT), vr(vT2)))
        a("v_max_f32 %s, %s, %s" % (vr(vT), vr(vT), vr(vT2)))
        a("v_mov_b32 %s, %s" % (vr(vT2), vr(vT)))
        a("s_nop 1")
        a("v_permlane16_swap_b32 %s, %s" % (vr(vT), vr(vT2)))
        a("v_max_f32 %s, %s, %s" % (vr(vMn), vr(vT), vr(vT2)))
        a("v_cmp_gt_f32 vcc, %s, %s" % (vr(vMn), vr(vM)))
        a("v_mul_f32 %s, %s, %s" % (vr(vMcn), sr(sC), vr(vMn)))
        a("s_cbranch_vccz L_noresc%d" % k)
        a("v_sub_f32 %s, %s, %s" % (vr(vAl), vr(vMc), vr(vMcn)))
        a("v_exp_f32 %s, %s" % (vr(vAl), vr(vAl)))
        a("v_mov_b32 %s, %s" % (vr(vM), vr(vMn)))
        a("v_mov_b32 %s, %s" % (vr(vMc), vr(vMcn)))
        a("v_mul_f32 %s, %s, %s" % (vr(vL), vr(vL), vr(vAl)))
        for r in range(32):
            a("v_mul_f32 %s, %s, %s" % (vr(vAcc + r), vr(vAcc + r), vr(vAl)))
        a.label("L_noresc%d" % k)
        for r in range(4):
            a("v_fma_f32 %s, %s, %s, -%s" % (vr(vP + r), vr(vS + r), sr(sC), vr(vMc)))
        for r in range(4):
            a("v_exp_f32 %s, %s" % (vr(vP + r), vr(vP + r)))
        a("s_nop 0")
        a("v_add_f32 %s, %s, %s" % (vr(vT), vr(vP), vr(vP + 1)))
        a("v_add_f32 %s, %s, %s" % (vr(vT2), vr(vP + 2), vr(vP + 3)))
        a("v_cvt_pk_bf16_f32 %s, %s, %s" % (vr(vPk), vr(vP), vr(vP + 1)))
        a("v_cvt_pk_bf16_f32 %s, %s, %s" % (vr(vPk + 1), vr(vP + 2), vr(vP + 3)))
        a("v_add_f32 %s, %s, %s" % (vr(vT), vr(vT), vr(vT2)))
        a("v_add_f32 %s, %s, %s" % (vr(vL), vr(vL), vr(vT)))
        wait_for(("V", k))
        vb = b + 16
        for c in range(4):
            for h in range(2):
                j = 2 * c + h
                sel = sSelHi if h else sSelLo
                a("v_perm_b32 %s, %s, %s, %s" % (vr(vVt + 2 * j), vr(vb + 4 + c), vr(vb + c), sr(sel)))
                a("v_perm_b32 %s, %s, %s, %s" % (vr(vVt + 2 * j + 1), vr(vb + 12 + c), vr(vb + 8 + c), sr(sel)))
        if k + D < NPG:
            loadV(k + D); seq.append(("V", k + D))
        else:
            a("s_nop 1")
        for j in range(8):
            a("v_mfma_f32_16x16x16_bf16 %s, %s, %s, %s" % (vr(vAcc + 4 * j, 4), vr(vVt + 2 * j, 2), vr(vPk, 2), vr(vAcc + 4 * j, 4)))
    a.label("L_epi")
    st()
    if stamp:
        a("s_waitcnt lgkmcnt(0)")
        a("s_cmp_lg_u32 %s, 0" % sr(sWave))
        a("s_cbranch_scc1 L_nost")
        a("s_cmp_eq_u32 s2, 0")
        a("s_cselect_b32 s98, 0, 32")
        a("s_cbranch_scc1 L_dost")
        a("s_cmp_lg_u32 s2, 200")
        a("s_cbranch_scc1 L_nost")
        a.label("L_dost")
        a("v_mov_b32 v90, 0x8000000")
        for i in range(len(stamps)):
            a("v_mov_b32 v91, s%d" % (64 + 2 * i))
            a("buffer_store_dword v91, v90, %s, s98 offen offset:%d" % (sr(sSW, 4), 4 * i))
            a("s_nop 1")
        a.label("L_nost")
    a("v_mov_b32 %s, %s" % (vr(vT2), vr(vL)))
    a("s_nop 1")
    a("v_permlane32_swap_b32 %s, %s" % (vr(vL), vr(vT2)))
    a("v_add_f32 %s, %s, %s" % (vr(vL), vr(vL), vr(vT2)))
    a("v_mov_b32 %s, %s" % (vr(vT2), vr(vL)))
    a("s_nop 1")
    a("v_permlane16_swap_b32 %s, %s" % (vr(vL), vr(vT2)))
    a("v_add_f32 %s, %s, %s" % (vr(vL), vr(vL), vr(vT2)))
    a("s_mul_i32 %s, %s, %d" % (sr(sTmp), sr(sWave), 64 * 80))
    a("v_mul_u32_u24 %s, 80, v0" % vr(vT))
    a("v_add_u32 %s, %s, %s" % (vr(vLds), sr(sTmp), vr(vT)))
    a("s_xor_b32 %s, %s, 4" % (sr(sTmp2), sr(sWave)))
    a("s_mul_i32 %s, %s, %d" % (sr(sTmp2), sr(sTmp2), 64 * 80))
    a("v_add_u32 %s, %s, %s" % (vr(vLds + 1), sr(sTmp2), vr(vT)))
    a("v_mov_b32 %s, %s" % (vr(vT2), vr(vL)))
    a("v_mov_b32 %s, %s" % (vr(94), vr(vMc)))
    a("v_mov_b32 %s, %s" % (vr(95), vr(vL)))
    a("s_nop 4")
    a("v_and_b32 %s, 15, v0" % vr(vT))
    a("v_lshrrev_b32 %s, 4, v0" % vr(vT2))
    a("v_lshlrev_b32 %s, 3, %s" % (vr(vSt), vr(vT)))
    a("v_lshl_add_u32 %s, %s, 1, %s" % (vr(vSt), vr(vT2), vr(vSt)))
    a("s_lshl_b32 %s, %s, 6" % (sr(sTmp), sr(sHead)))
    a("s_add_u32 %s, %s, %s" % (sr(sTmp), sr(sTmp), sr(sSub)))
    a("v_add_u32 %s, %s, %s" % (vr(vSt), sr(sTmp), vr(vSt)))
    a("v_mul_u32_u24 %s, %d, %s" % (vr(vSt), G, vr(vSt)))
    a("v_add_u32 %s, s2, %s" % (vr(vSt), vr(vSt)))
    a("v_lshlrev_b32 %s, 6, %s" % (vr(vSt), vr(vSt)))
    a("v_mov_b32 %s, 0x40000000" % vr(vAl))
    a("v_cmp_gt_u32 vcc, 8, %s" % vr(vT))
    a("s_lshl_b32 %s, %s, 3" % (sr(sTmp), sr(sHead)))
    a("s_nop 0")
    a("v_cndmask_b32 %s, %s, %s, vcc" % (vr(vSt), vr(vAl), vr(vSt)))
    a("v_add_u32 %s, %s, v0" % (vr(vMn), sr(sTmp)))
    a("v_mul_u32_u24 %s, %d, %s" % (vr(vMn), G, vr(vMn)))
    a("v_add_u32 %s, s2, %s" % (vr(vMn), vr(vMn)))
    a("v_lshlrev_b32 %s, 3, %s" % (vr(vMn), vr(vMn)))
    a("v_add_u32 %s, 0x%x, %s" % (vr(vMn), 32 * 8 * G * 64, vr(vMn)))
    a("v_cmp_gt_u32 vcc, 8, v0")
    a("s_nop 1")
    a("v_cndmask_b32 %s, %s, %s, vcc" % (vr(vMn), vr(vAl), vr(vMn)))
    a("s_cmp_eq_u32 %s, 1" % sr(sSub))
    a("s_cbranch_scc1 L_epi1")
    for s in range(2):
        if s == 1:
            a.label("L_epi1")
        own = vAcc + 16 * s
        oth = vAcc + 16 * (1 - s)
        for j in range(4):
            a("ds_write_b128 %s, %s offset:%d" % (vr(vLds), vr(oth + 4 * j, 4), 16 * j))
        a("ds_write_b64 %s, %s offset:64" % (vr(vLds), vr(94, 2)))
        a("s_waitcnt lgkmcnt(0)")
        a("s_barrier")
        for j in range(4):
            a("ds_read_b128 %s, %s offset:%d" % (vr(vVt + 4 * j, 4), vr(vLds + 1), 16 * j))
        a("ds_read_b64 %s, %s offset:64" % (vr(vP, 2), vr(vLds + 1)))
        a("s_waitcnt lgkmcnt(0)")
        a("v_max_f32 %s, %s, %s" % (vr(vMcn), vr(vMc), vr(vP)))
        a("v_max_f32 %s, 0xff7fffff, %s" % (vr(vT), vr(vMcn)))
        a("v_sub_f32 %s, %s, %s" % (vr(vAl), vr(vMc), vr(vT)))
        a("v_sub_f32 %s, %s, %s" % (vr(vT2), vr(vP), vr(vT)))
        a("v_exp_f32 %s, %s" % (vr(vAl), vr(vAl)))
        a("v_exp_f32 %s, %s" % (vr(vT2), vr(vT2)))
        a("s_nop 0")
        for r in range(16):
            a("v_mul_f32 %s, %s, %s" % (vr(own + r), vr(own + r), vr(vAl)))
            a("v_fmac_f32 %s, %s, %s" % (vr(own + r), vr(vVt + r), vr(vT2)))
        for j in range(4):
            a("buffer_store_dwordx4 %s, %s, %s, 0 offen offset:%d" % (vr(own + 4 * j, 4), vr(vSt), sr(sSW, 4), 16 * j))
        if s == 0:
            a("v_mul_f32 %s, %s, %s" % (vr(95), vr(vL), vr(vAl)))
            a("v_fmac_f32 %s, %s, %s" % (vr(95), vr(vP + 1), vr(vT2)))
            a("v_mov_b32 %s, %s" % (vr(94), vr(vMcn)))
            a("buffer_store_dwordx2 %s, %s, %s, 0 offen" % (vr(94, 2), vr(vMn), sr(sSW, 4)))
            a("s_endpgm")
    a.label("L_main_end")
    a("s_endpgm")

    a.raw(".globl fd_comb_kernel")
    a.raw(".p2align 8")
    a.raw(".type fd_comb_kernel,@function")
    a.label("fd_comb_kernel")
    NS = G // 16
    NA = G // 64
    a("s_cmp_ge_u32 s2, 256")
    a("s_cbranch_scc1 L_comb_end")
    a("s_load_dwordx2 s[4:5], s[0:1], 56")
    a("s_load_dwordx2 s[6:7], s[0:1], 40")
    a("s_mul_i32 s3, s2, %d" % (G * 64))
    a("v_lshlrev_b32 v1, 4, v0")
    a("v_add_u32 v1, s3, v1")
    a("s_lshr_b32 s16, s2, 3")
    a("s_mul_i32 s17, s16, %d" % (G * 8))
    a("s_add_u32 s17, s17, 0x%x" % (32 * 8 * G * 64))
    a("v_lshrrev_b32 v2, 2, v0")
    a("v_lshlrev_b32 v2, 3, v2")
    a("v_add_u32 v2, s17, v2")
    a("v_lshlrev_b32 v3, 3, v0")
    a("v_add_u32 v3, s17, v3")
    a("s_waitcnt lgkmcnt(0)")
    a("s_mov_b32 s8, s4")
    a("s_and_b32 s9, s5, 0xffff")
    a("s_mov_b32 s10, 0x10000000")
    a("s_mov_b32 s11, 0x00020000")
    a("s_mov_b32 s12, s6")
    a("s_and_b32 s13, s7, 0xffff")
    a("s_mov_b32 s14, 8192")
    a("s_mov_b32 s15, 0x00020000")
    if stamp:
        a("s_load_dwordx2 s[20:21], s[0:1], 48")
        a("s_memrealtime s[26:27]")
        a("s_waitcnt lgkmcnt(0)")
        a("s_and_b32 s21, s21, 0xffff")
        a("s_mov_b32 s22, 64")
        a("s_mov_b32 s23, 0x00020000")
        a("s_cmp_lg_u32 s2, 0")
        a("s_cbranch_scc1 L_nocp")
        a("v_lshlrev_b32 v7, 2, v0")
        a("v_add_u32 v6, 0x8000000, v7")
        a("buffer_load_dword v5, v6, s[8:11], 0 offen")
        a("s_waitcnt vmcnt(0)")
        a("v_mov_b32 v6, s26")
        a("v_cmp_eq_u32 vcc, 15, v0")
        a("s_nop 1")
        a("v_cndmask_b32 v5, v5, v6, vcc")
        a("buffer_store_dword v5, v7, s[20:23], 0 offen")
        a.label("L_nocp")
    vAll = 8
    vOwn = vAll + 2 * NA
    vO = (vOwn + 2 * NS + 3) // 4 * 4
    for k in range(NA):
        a("buffer_load_dwordx2 %s, v3, s[8:11], 0 offen offset:%d" % (vr(vAll + 2 * k, 2), 512 * k))
    for k in range(NS):
        a("buffer_load_dwordx2 %s, v2, s[8:11], 0 offen offset:%d" % (vr(vOwn + 2 * k, 2), 128 * k))
    for k in range(NS):
        if 1024 * k < 4096:
            a("buffer_load_dwordx4 %s, v1, s[8:11], 0 offen offset:%d" % (vr(vO + 4 * k, 4), 1024 * k))
        else:
            a("s_mov_b32 s18, %d" % (1024 * k // 4096 * 4096))
            a("buffer_load_dwordx4 %s, v1, s[8:11], s18 offen offset:%d" % (vr(vO + 4 * k, 4), 1024 * k % 4096))
    a("s_waitcnt vmcnt(%d)" % (2 * NS))
    a("v_mov_b32 v4, %s" % vr(vAll))
    for k in range(1, NA):
        a("v_max_f32 v4, v4, %s" % vr(vAll + 2 * k))
    def wave_reduce(reg, tmp, op):
        a("s_nop 1")
        a("%s_dpp %s, %s, %s quad_perm:[1,0,3,2] row_mask:0xf bank_mask:0xf" % (op, vr(reg), vr(reg), vr(reg)))
        a("s_nop 1")
        a("%s_dpp %s, %s, %s quad_perm:[2,3,0,1] row_mask:0xf bank_mask:0xf" % (op, vr(reg), vr(reg), vr(reg)))
        reduce_hi(reg, tmp, op)
    def reduce_hi(reg, tmp, op):
        a("s_nop 1")
        a("%s_dpp %s, %s, %s row_ror:4 row_mask:0xf bank_mask:0xf" % (op, vr(reg), vr(reg), vr(reg)))
        a("s_nop 1")
        a("%s_dpp %s, %s, %s row_ror:8 row_mask:0xf bank_mask:0xf" % (op, vr(reg), vr(reg), vr(reg)))
        a("v_mov_b32 %s, %s" % (vr(tmp), vr(reg)))
        a("s_nop 1")
        a("v_permlane16_swap_b32 %s, %s" % (vr(reg), vr(tmp)))
        a("%s %s, %s, %s" % (op, vr(reg), vr(reg), vr(tmp)))
        a("v_mov_b32 %s, %s" % (vr(tmp), vr(reg)))
        a("s_nop 1")
        a("v_permlane32_swap_b32 %s, %s" % (vr(reg), vr(tmp)))
        a("%s %s, %s, %s" % (op, vr(reg), vr(reg), vr(tmp)))
    wave_reduce(4, 5, "v_max_f32")
    a("v_mov_b32 v6, 0")
    for k in range(NA):
        a("v_sub_f32 v5, %s, v4" % vr(vAll + 2 * k))
        a("v_exp_f32 v5, v5")
        a("s_nop 0")
        a("v_fmac_f32 v6, v5, %s" % vr(vAll + 2 * k + 1))
    wave_reduce(6, 5, "v_add_f32")
    a("s_waitcnt vmcnt(%d)" % NS)
    for k in range(NS):
        a("v_sub_f32 %s, %s, v4" % (vr(vOwn + 2 * k), vr(vOwn + 2 * k)))
    for k in range(NS):
        a("v_exp_f32 %s, %s" % (vr(vOwn + 2 * k), vr(vOwn + 2 * k)))
    a("v_rcp_f32 v6, v6")
    vR = vO + 4 * NS
    for k in range(NS):
        a("s_waitcnt vmcnt(%d)" % (NS - 1 - k))
        for r in range(4):
            if k == 0:
                a("v_mul_f32 %s, %s, %s" % (vr(vR + r), vr(vOwn), vr(vO + r)))
            else:
                a("v_fmac_f32 %s, %s, %s" % (vr(vR + r), vr(vOwn + 2 * k), vr(vO + 4 * k + r)))
    for r in range(4):
        reduce_hi(vR + r, 5, "v_add_f32")
    for r in range(4):
        a("v_mul_f32 %s, %s, v6" % (vr(vR + r), vr(vR + r)))
    a("v_cvt_pk_bf16_f32 %s, %s, %s" % (vr(vR), vr(vR), vr(vR + 1)))
    a("v_cvt_pk_bf16_f32 %s, %s, %s" % (vr(vR + 2), vr(vR + 2), vr(vR + 3)))
    a("s_and_b32 s18, s2, 7")
    a("s_lshr_b32 s19, s18, 1")
    a("s_and_b32 s18, s18, 1")
    a("s_lshl_b32 s19, s19, 5")
    a("s_lshl_b32 s18, s18, 2")
    a("s_add_u32 s18, s18, s19")
    a("s_lshl_b32 s19, s16, 7")
    a("s_add_u32 s18, s18, s19")
    a("v_add_u32 v1, s18, v0")
    a("v_lshlrev_b32 v1, 1, v1")
    a("v_mov_b32 v2, 0x40000000")
    a("v_cmp_gt_u32 vcc, 4, v0")
    a("s_nop 1")
    a("v_cndmask_b32 v1, v2, v1, vcc")
    a("v_lshrrev_b32 %s, 16, %s" % (vr(vR + 1), vr(vR)))
    a("v_lshrrev_b32 %s, 16, %s" % (vr(vR + 3), vr(vR + 2)))
    for r in range(4):
        a("buffer_store_short %s, v1, s[12:15], 0 offen offset:%d" % (vr(vR + r), 16 * r))
    a.label("L_comb_end")
    a("s_endpgm")
    nv2 = vR + 4
    a.raw('.section .rodata,"a"')
    for nm, nv in (("fd_main_kernel", nvgpr), ("fd_comb_kernel", nv2)):
        a.raw(".p2align 6")
        a.raw(".amdhsa_kernel %s" % nm)
        a.raw("  .amdhsa_next_free_vgpr %d" % nv)
        a.raw("  .amdhsa_next_free_sgpr 102")
        a.raw("  .amdhsa_accum_offset %d" % ((nv + 3) // 4 * 4))
        a.raw("  .amdhsa_group_segment_fixed_size 0")
        a.raw("  .amdhsa_kernarg_size 64")
        a.raw("  .amdhsa_user_sgpr_count 2")
        a.raw("  .amdhsa_user_sgpr_kernarg_segment_ptr 1")
        a.raw("  .amdhsa_system_sgpr_workgroup_id_x 1")
        a.raw(".end_amdhsa_kernel")
    return a.text()

if __name__ == "__main__":
    out = sys.argv[1] if len(sys.argv) > 1 else "cdna_kernels/%s.s" % NAME
    kw = {}
    for x in sys.argv[2:]:
        k, v = x.split("=")
        kw[k] = int(v)
    open(out, "w").write(gen(**kw))
```

```python
import sys
sys.path.insert(0, "gen")
NAME = "standalone__paged_block_table_kv_radixattention__decode"
HDR = open("cdna_kernels/%s.s.ref" % NAME).read().split("; Override launch geometry")[0]

class Asm:
    def __init__(self):
        self.lines = []
    def __call__(self, s):
        self.lines.append("    " + s)
    def label(self, s):
        self.lines.append(s + ":")
    def raw(self, s):
        self.lines.append(s)
    def text(self):
        return "\n".join(self.lines) + "\n"

def vr(a, n=1):
    return "v%d" % a if n == 1 else "v[%d:%d]" % (a, a + n - 1)
def sr(a, n=1):
    return "s%d" % a if n == 1 else "s[%d:%d]" % (a, a + n - 1)

KP, VP = 1088, 1056
KSZ, VSZ = 4 * KP, 4 * VP
SLOT = KSZ + VSZ

def gen(G=256, D=4, nt=1, stamp=0, exp=0):
    NTF = " nt" if nt else ""
    a = Asm()
    a.raw(HDR.rstrip())
    a.raw("; @launch kernel=fd_main_kernel grid=(%d,1,1) block=(256,1,1) lds=%d" % (G, 4 * D * SLOT))
    a.raw("; @launch kernel=fd_comb_kernel grid=(256,1,1) block=(64,1,1) lds=0")
    a.raw('.amdgcn_target "amdgcn-amd-amdhsa--gfx950"')
    a.raw(".text")
    a.raw(".globl fd_main_kernel")
    a.raw(".p2align 8")
    a.raw(".type fd_main_kernel,@function")
    a.label("fd_main_kernel")
    vI, vG = 1, 2
    vBT, vPg = 3, 4
    vKs = 8
    vVs = 12
    vKa, vVa0, vVa1 = 16, 17, 18
    vKa2, vVb0, vVb1 = 19, 20, 21
    vTok, vNinf, vSt, vMl = 22, 23, 24, 25
    vM, vMc, vL, vT, vT2, vMn, vMcn, vAl = 26, 27, 28, 29, 30, 31, 32, 33
    vP = 36
    vPk = 40
    vE = 42
    vS = 44
    vQ = 48
    vAcc = 64
    vK = 96
    vVt = 112
    nvgpr = 128
    sQ, sK, sV, sBT = 4, 6, 8, 10
    sCtxP, sWsP = 12, 14
    sSK, sSV, sSQ, sSW, sSB = 16, 20, 24, 28, 32
    sHead, sCtx, sNp, sLast, sRem, sN, sMaskIt = 36, 37, 38, 39, 40, 41, 42
    sC, sTmp, sTmp2, sIt, sSlot, sOff, sLdsBase, sKD, sM0 = 43, 44, 45, 46, 47, 48, 49, 50, 51
    nst = [0]
    def st():
        if stamp == 2:
            a("s_memrealtime s[%d:%d]" % (64 + 2 * nst[0], 65 + 2 * nst[0])); nst[0] += 1
    a("s_cmp_ge_u32 s2, %d" % G)
    a("s_cbranch_scc1 L_main_end")
    st()
    a("s_load_dwordx8 s[4:11], s[0:1], 0")
    a("s_load_dwordx2 s[12:13], s[0:1], 32")
    a("s_load_dwordx2 s[14:15], s[0:1], 56")
    a("v_lshrrev_b32 v1, 6, v0")
    a("v_and_b32 v0, 63, v0")
    a("v_readfirstlane_b32 %s, v1" % sr(sHead))
    a("v_and_b32 %s, 15, v0" % vr(vI))
    a("v_lshrrev_b32 %s, 4, v0" % vr(vG))
    a("v_mul_u32_u24 %s, %d, v0" % (vr(vPg), G))
    a("v_add_u32 %s, s2, %s" % (vr(vPg), vr(vPg)))
    a("v_lshlrev_b32 %s, 2, %s" % (vr(vBT), vr(vPg)))
    a("s_lshl_b32 %s, %s, 8" % (sr(sTmp), sr(sHead)))
    a("s_mul_i32 %s, %s, %d" % (sr(sLdsBase), sr(sHead), D * SLOT))
    a("v_xor_b32 %s, %s, %s" % (vr(vT), vr(vI), vr(vG)))
    a("v_lshlrev_b32 %s, 4, %s" % (vr(vT), vr(vT)))
    a("v_lshl_add_u32 %s, %s, 10, %s" % (vr(vT), vr(vG), vr(vT)))
    a("v_add_u32 %s, %s, %s" % (vr(vKs), sr(sTmp), vr(vT)))
    for n in range(1, 4):
        a("v_add_u32 %s, %d, %s" % (vr(vKs + n), (4096 - KP) * n, vr(vKs)))
    a("v_and_b32 %s, 1, %s" % (vr(vT), vr(vG)))
    a("v_lshlrev_b32 %s, 3, %s" % (vr(vT), vr(vT)))
    a("v_xor_b32 %s, %s, %s" % (vr(vT), vr(vI), vr(vT)))
    a("v_lshlrev_b32 %s, 4, %s" % (vr(vT), vr(vT)))
    a("v_lshl_add_u32 %s, %s, 12, %s" % (vr(vT), vr(vG), vr(vT)))
    a("v_add_u32 %s, %s, %s" % (vr(vVs), sr(sTmp), vr(vT)))
    for n in range(1, 4):
        a("v_subrev_u32 %s, %d, %s" % (vr(vVs + n), (VP - 1024) * n, vr(vVs)))
    a("v_lshrrev_b32 %s, 2, %s" % (vr(vT), vr(vI)))
    a("v_mul_u32_u24 %s, %d, %s" % (vr(vKa), KP, vr(vT)))
    a("v_and_b32 %s, 3, %s" % (vr(vT), vr(vI)))
    a("v_lshl_add_u32 %s, %s, 8, %s" % (vr(vKa), vr(vT), vr(vKa)))
    a("v_xor_b32 %s, %s, %s" % (vr(vT), vr(vT), vr(vG)))
    a("v_lshl_add_u32 %s, %s, 4, %s" % (vr(vKa), vr(vT), vr(vKa)))
    a("v_add_u32 %s, %s, %s" % (vr(vKa), sr(sLdsBase), vr(vKa)))
    a("v_lshrrev_b32 %s, 2, %s" % (vr(vT), vr(vI)))
    a("v_mul_u32_u24 %s, %d, %s" % (vr(vVa0), VP, vr(vT)))
    a("v_lshl_add_u32 %s, %s, 8, %s" % (vr(vVa0), vr(vG), vr(vVa0)))
    a("v_and_b32 %s, 3, %s" % (vr(vT), vr(vI)))
    a("v_lshl_add_u32 %s, %s, 3, %s" % (vr(vVa0), vr(vT), vr(vVa0)))
    a("v_add_u32 %s, %s, %s" % (vr(vVa0), sr(sLdsBase), vr(vVa0)))
    a("v_add_u32 %s, %d, %s" % (vr(vVa0), KSZ, vr(vVa0)))
    a("v_and_b32 %s, 1, %s" % (vr(vT), vr(vG)))
    a("v_xor_b32 %s, 1, %s" % (vr(vT2), vr(vT)))
    a("v_lshl_add_u32 %s, %s, 7, %s" % (vr(vVa1), vr(vT2), vr(vVa0)))
    a("v_lshl_add_u32 %s, %s, 7, %s" % (vr(vVa0), vr(vT), vr(vVa0)))
    a("v_lshlrev_b32 %s, 2, %s" % (vr(vTok), vr(vG)))
    a("s_lshl_b32 %s, %s, 11" % (sr(sTmp2), sr(sHead)))
    a("v_lshlrev_b32 %s, 8, %s" % (vr(vSt), vr(vI)))
    a("v_lshl_add_u32 %s, %s, 4, %s" % (vr(vSt), vr(vG), vr(vSt)))
    a("v_add_u32 %s, %s, %s" % (vr(vSt), sr(sTmp2), vr(vSt)))
    a("v_mov_b32 %s, 0x40000000" % vr(vAl))
    a("v_cmp_gt_u32 vcc, 8, %s" % vr(vI))
    a("s_mov_b32 %s, 0x3e0293ee" % sr(sC))
    a("s_mov_b32 %s, 0x00020000" % sr(sSB + 3))
    a("v_cndmask_b32 %s, %s, %s, vcc" % (vr(vSt), vr(vAl), vr(vSt)))
    a("s_mov_b32 %s, 16384" % sr(sSB + 2))
    a("s_waitcnt lgkmcnt(0)")
    a("s_load_dword %s, %s, 0" % (sr(sCtx), sr(sCtxP, 2)))
    a("s_mov_b32 %s, %s" % (sr(sSB), sr(sBT)))
    a("s_and_b32 %s, %s, 0xffff" % (sr(sSB + 1), sr(sBT + 1)))
    a("buffer_load_dword %s, %s, %s, 0 offen" % (vr(vBT), vr(vBT), sr(sSB, 4)))
    for (srd, ptr, nbytes) in ((sSQ, sQ, 8192), (sSK, sK, 0x4000000), (sSV, sV, 0x4000000), (sSW, sWsP, 0x10000000)):
        a("s_mov_b32 %s, %s" % (sr(srd), sr(ptr)))
        a("s_and_b32 %s, %s, 0xffff" % (sr(srd + 1), sr(ptr + 1)))
        a("s_mov_b32 %s, 0x%x" % (sr(srd + 2), nbytes))
        a("s_mov_b32 %s, 0x00020000" % sr(srd + 3))
        if srd == sSQ:
            for j in range(4):
                a("buffer_load_dwordx4 %s, %s, %s, 0 offen offset:%d" % (vr(vQ + 4 * j, 4), vr(vSt), sr(sSQ, 4), 64 * j))
    a("s_sub_u32 %s, %s, 128" % (sr(sSV), sr(sSV)))
    a("s_subb_u32 %s, %s, 0" % (sr(sSV + 1), sr(sSV + 1)))
    a("s_mov_b32 %s, 0x4000080" % sr(sSV + 2))
    for n in range(4):
        a("v_add_u32 %s, 128, %s" % (vr(vVs + n), vr(vVs + n)))
    for r in range(32):
        a("v_mov_b32 %s, 0" % vr(vAcc + r))
    a("v_mov_b32 %s, 0xff800000" % vr(vNinf))
    a("v_mov_b32 %s, 0xff800000" % vr(vM))
    a("v_mov_b32 %s, 0xff800000" % vr(vMc))
    a("v_mov_b32 %s, 0" % vr(vL))
    a("v_bfrev_b32 %s, 1" % vr(vAl))
    a("s_waitcnt lgkmcnt(0)")
    a("s_mov_b32 %s, %s" % (sr(sTmp2), sr(sCtx)))
    a("s_cmp_lt_i32 %s, 1" % sr(sCtx))
    a("s_cselect_b32 %s, 0x10000, %s" % (sr(sCtx), sr(sCtx)))
    a("s_min_u32 %s, %s, 0x10000" % (sr(sCtx), sr(sCtx)))
    a("s_add_u32 %s, %s, 15" % (sr(sNp), sr(sCtx)))
    a("s_lshr_b32 %s, %s, 4" % (sr(sNp), sr(sNp)))
    a("v_cmp_gt_u32 s[52:53], %s, %s" % (sr(sNp), vr(vPg)))
    a("s_waitcnt vmcnt(4)")
    st()
    a("v_cmp_gt_i32 vcc, 0, %s" % vr(vBT))
    a("v_add_u32 %s, 4096, %s" % (vr(vT), vr(vBT)))
    a("s_mov_b32 %s, 0" % sr(sIt))
    a("v_cndmask_b32 %s, %s, %s, vcc" % (vr(vBT), vr(vBT), vr(vT)))
    a("v_lshlrev_b32 %s, 14, %s" % (vr(vBT), vr(vBT)))
    a("v_cndmask_b32 %s, %s, %s, s[52:53]" % (vr(vBT), vr(vAl), vr(vBT)))
    a("s_mov_b32 %s, %s" % (sr(sM0), sr(sLdsBase)))
    def dmaK():
        for n in range(4):
            a("buffer_load_dwordx4 %s, %s, %s offen offset:%d%s lds" % (vr(vKs + n), sr(sSK, 4), sr(sOff), KP * n, NTF))
    def dmaV():
        for n in range(4):
            a("buffer_load_dwordx4 %s, %s, %s offen offset:%d%s lds" % (vr(vVs + n), sr(sSV, 4), sr(sOff), VP * n, NTF))
    a.label("L_pro")
    a("v_readlane_b32 %s, %s, %s" % (sr(sOff), vr(vBT), sr(sIt)))
    a("s_mov_b32 m0, %s" % sr(sM0))
    a("s_add_u32 %s, %s, %d" % (sr(sTmp), sr(sM0), KSZ))
    a("s_add_u32 %s, %s, %d" % (sr(sM0), sr(sM0), SLOT))
    a("s_add_u32 %s, %s, 1" % (sr(sIt), sr(sIt)))
    a("s_nop 0")
    dmaK()
    a("s_mov_b32 m0, %s" % sr(sTmp))
    a("s_cmp_lt_u32 %s, %d" % (sr(sIt), D))
    dmaV()
    a("s_cbranch_scc1 L_pro")
    a("s_sub_u32 %s, %s, 1" % (sr(sLast), sr(sNp)))
    a("s_lshl_b32 %s, %s, 4" % (sr(sTmp), sr(sLast)))
    a("s_sub_u32 %s, %s, %s" % (sr(sRem), sr(sCtx), sr(sTmp)))
    a("s_add_u32 %s, %s, %d" % (sr(sN), sr(sNp), G - 1))
    a("s_sub_u32 %s, %s, s2" % (sr(sN), sr(sN)))
    a("s_lshr_b32 %s, %s, %d" % (sr(sN), sr(sN), G.bit_length() - 1))
    a("s_and_b32 %s, %s, %d" % (sr(sTmp), sr(sLast), G - 1))
    a("s_sub_u32 %s, %s, 1" % (sr(sMaskIt), sr(sN)))
    a("s_cmp_eq_u32 %s, s2" % sr(sTmp))
    a("s_cselect_b32 %s, %s, -1" % (sr(sMaskIt), sr(sMaskIt)))
    a("s_mov_b32 %s, 0" % sr(sIt))
    a("s_mov_b32 %s, 0" % sr(sSlot))
    a("s_mov_b32 %s, %d" % (sr(sKD), D))
    a("s_cmp_gt_i32 %s, 0" % sr(sTmp2))
    a("s_cbranch_scc1 L_qok")
    a("s_waitcnt vmcnt(%d)" % (8 * D))
    for r in range(16):
        a("v_mov_b32 %s, 0" % vr(vQ + r))
    a.label("L_qok")
    a("s_cmp_eq_u32 %s, 0" % sr(sN))
    a("s_cbranch_scc1 L_epi")
    a.raw(".p2align 6")
    a.label("L_loop")
    a("v_add_u32 %s, %s, %s" % (vr(vKa2), sr(sSlot), vr(vKa)))
    a("v_add_u32 %s, %s, %s" % (vr(vVb0), sr(sSlot), vr(vVa0)))
    a("v_add_u32 %s, %s, %s" % (vr(vVb1), sr(sSlot), vr(vVa1)))
    a("v_readlane_b32 %s, %s, %s" % (sr(sOff), vr(vBT), sr(sKD)))
    a("s_add_u32 %s, %s, %s" % (sr(sM0), sr(sLdsBase), sr(sSlot)))
    a("s_mov_b32 m0, %s" % sr(sM0))
    a("s_waitcnt vmcnt(%d)" % (8 * D - 4))
    if exp < 2:
      for j in range(4):
        a("ds_read_b128 %s, %s offset:%d" % (vr(vK + 4 * j, 4), vr(vKa2), 64 * j))
      for j in range(4):
        a("s_waitcnt lgkmcnt(%d)" % (3 - j))
        c = "0" if j == 0 else vr(vS, 4)
        a("v_mfma_f32_16x16x32_bf16 %s, %s, %s, %s" % (vr(vS, 4), vr(vK + 4 * j, 4), vr(vQ + 4 * j, 4), c))
    dmaK()
    a("s_add_u32 %s, %s, %d" % (sr(sM0), sr(sM0), KSZ))
    a("s_waitcnt vmcnt(%d)" % (8 * D - 4))
    if exp < 2:
      for b in range(8):
        a("ds_read_b64_tr_b16 %s, %s offset:%d" % (vr(vVt + 2 * b, 2), vr(vVb0 if b < 4 else vVb1), 32 * (b & 3)))
    a("s_mov_b32 m0, %s" % sr(sM0))
    if exp: a("s_branch L_skipc")
    a("s_cmp_lg_u32 %s, %s" % (sr(sIt), sr(sMaskIt)))
    a("s_cbranch_scc1 L_nomask")
    for r in range(4):
        a("v_add_u32 %s, %d, %s" % (vr(vT), r, vr(vTok)))
        a("v_cmp_gt_u32 vcc, %s, %s" % (sr(sRem), vr(vT)))
        a("s_nop 1")
        a("v_cndmask_b32 %s, %s, %s, vcc" % (vr(vS + r), vr(vNinf), vr(vS + r)))
    a.label("L_nomask")
    a("v_max3_f32 %s, %s, %s, %s" % (vr(vT), vr(vS), vr(vS + 1), vr(vS + 2)))
    a("v_max3_f32 %s, %s, %s, %s" % (vr(vT), vr(vT), vr(vS + 3), vr(vM)))
    a("v_mov_b32 %s, %s" % (vr(vT2), vr(vT)))
    a("s_nop 1")
    a("v_permlane32_swap_b32 %s, %s" % (vr(vT), vr(vT2)))
    a("v_max_f32 %s, %s, %s" % (vr(vT), vr(vT), vr(vT2)))
    a("v_mov_b32 %s, %s" % (vr(vT2), vr(vT)))
    a("s_nop 1")
    a("v_permlane16_swap_b32 %s, %s" % (vr(vT), vr(vT2)))
    a("v_max_f32 %s, %s, %s" % (vr(vMn), vr(vT), vr(vT2)))
    a("v_cmp_gt_f32 vcc, %s, %s" % (vr(vMn), vr(vM)))
    a("v_mul_f32 %s, %s, %s" % (vr(vMcn), sr(sC), vr(vMn)))
    a("s_cbranch_vccz L_noresc")
    a("v_sub_f32 %s, %s, %s" % (vr(vAl), vr(vMc), vr(vMcn)))
    a("v_exp_f32 %s, %s" % (vr(vAl), vr(vAl)))
    a("v_mov_b32 %s, %s" % (vr(vM), vr(vMn)))
    a("v_mov_b32 %s, %s" % (vr(vMc), vr(vMcn)))
    a("v_mul_f32 %s, %s, %s" % (vr(vL), vr(vL), vr(vAl)))
    for r in range(32):
        a("v_mul_f32 %s, %s, %s" % (vr(vAcc + r), vr(vAcc + r), vr(vAl)))
    a.label("L_noresc")
    for r in range(4):
        a("v_fma_f32 %s, %s, %s, -%s" % (vr(vP + r), vr(vS + r), sr(sC), vr(vMc)))
    for r in range(4):
        a("v_exp_f32 %s, %s" % (vr(vP + r), vr(vP + r)))
    a("s_nop 0")
    a("v_cvt_pk_bf16_f32 %s, %s, %s" % (vr(vPk), vr(vP), vr(vP + 1)))
    a("v_cvt_pk_bf16_f32 %s, %s, %s" % (vr(vPk + 1), vr(vP + 2), vr(vP + 3)))
    a("v_add_f32 %s, %s, %s" % (vr(vT), vr(vP), vr(vP + 1)))
    a("v_add_f32 %s, %s, %s" % (vr(vT2), vr(vP + 2), vr(vP + 3)))
    a("s_waitcnt lgkmcnt(0)")
    for b in range(8):
        a("v_mfma_f32_16x16x16_bf16 %s, %s, %s, %s" % (vr(vAcc + 4 * b, 4), vr(vVt + 2 * b, 2), vr(vPk, 2), vr(vAcc + 4 * b, 4)))
    a.label("L_skipc")
    a("s_waitcnt lgkmcnt(0)")
    a("s_add_u32 %s, %s, %d" % (sr(sSlot), sr(sSlot), SLOT))
    dmaV()
    a("v_add_f32 %s, %s, %s" % (vr(vT), vr(vT), vr(vT2)))
    a("v_add_f32 %s, %s, %s" % (vr(vL), vr(vL), vr(vT)))
    a("s_cmp_eq_u32 %s, %d" % (sr(sSlot), D * SLOT))
    a("s_cselect_b32 %s, 0, %s" % (sr(sSlot), sr(sSlot)))
    a("s_add_u32 %s, %s, 1" % (sr(sKD), sr(sKD)))
    a("s_add_u32 %s, %s, 1" % (sr(sIt), sr(sIt)))
    a("s_cmp_lt_u32 %s, %s" % (sr(sIt), sr(sN)))
    a("s_cbranch_scc1 L_loop")
    a.label("L_epi")
    st()
    a("s_lshl_b32 %s, %s, 3" % (sr(sTmp), sr(sHead)))
    a("v_add_u32 %s, %s, %s" % (vr(vSt), sr(sTmp), vr(vI)))
    a("v_mul_u32_u24 %s, %d, %s" % (vr(vMl), G, vr(vSt)))
    a("v_lshlrev_b32 %s, 9, %s" % (vr(vSt), vr(vMl)))
    a("s_lshl_b32 %s, s2, 6" % sr(sTmp))
    a("v_lshl_add_u32 %s, %s, 4, %s" % (vr(vSt), vr(vG), vr(vSt)))
    a("v_add_u32 %s, %s, %s" % (vr(vSt), sr(sTmp), vr(vSt)))
    a("v_cmp_gt_u32 vcc, 8, %s" % vr(vI))
    a("v_bfrev_b32 %s, 2" % vr(vAl))
    a("v_mov_b32 %s, %s" % (vr(vT2), vr(vL)))
    a("v_cndmask_b32 %s, %s, %s, vcc" % (vr(vSt), vr(vAl), vr(vSt)))
    for b in range(8):
        a("s_mov_b32 %s, %d" % (sr(sTmp), b * G * 64))
        a("buffer_store_dwordx4 %s, %s, %s, %s offen" % (vr(vAcc + 4 * b, 4), vr(vSt), sr(sSW, 4), sr(sTmp)))
    a("v_permlane32_swap_b32 %s, %s" % (vr(vL), vr(vT2)))
    a("v_add_f32 %s, %s, %s" % (vr(vL), vr(vL), vr(vT2)))
    a("v_mov_b32 %s, %s" % (vr(vT2), vr(vL)))
    a("v_add_u32 %s, s2, %s" % (vr(vMl), vr(vMl)))
    a("v_lshlrev_b32 %s, 3, %s" % (vr(vMl), vr(vMl)))
    a("v_permlane16_swap_b32 %s, %s" % (vr(vL), vr(vT2)))
    a("v_add_f32 %s, %s, %s" % (vr(vE + 1), vr(vL), vr(vT2)))
    a("v_add_u32 %s, 0x%x, %s" % (vr(vMl), 32 * 8 * G * 64, vr(vMl)))
    a("v_cmp_gt_u32 vcc, 8, v0")
    a("v_mov_b32 %s, %s" % (vr(vE), vr(vMc)))
    a("s_nop 0")
    a("v_cndmask_b32 %s, %s, %s, vcc" % (vr(vMl), vr(vAl), vr(vMl)))
    a("buffer_store_dwordx2 %s, %s, %s, 0 offen" % (vr(vE, 2), vr(vMl), sr(sSW, 4)))
    if stamp == 2:
        st()
        a("s_waitcnt vmcnt(0)")
        st()
        a("s_waitcnt lgkmcnt(0)")
        a("s_lshl_b32 s96, s2, 2")
        a("s_add_u32 s96, s96, %s" % sr(sHead))
        a("s_lshl_b32 s96, s96, 6")
        a("v_mov_b32 v90, 0x8000000")
        for i in range(nst[0]):
            a("v_mov_b32 v91, s%d" % (64 + 2 * i))
            a("buffer_store_dword v91, v90, %s, s96 offen offset:%d" % (sr(sSW, 4), 4 * i))
            a("s_nop 1")
    a.label("L_main_end")
    a("s_endpgm")
    nv2 = comb(a, G)
    a.raw('.section .rodata,"a"')
    for nm, nv in (("fd_main_kernel", nvgpr), ("fd_comb_kernel", nv2)):
        a.raw(".p2align 6")
        a.raw(".amdhsa_kernel %s" % nm)
        a.raw("  .amdhsa_next_free_vgpr %d" % nv)
        a.raw("  .amdhsa_next_free_sgpr %d" % (100 if stamp else 64))
        a.raw("  .amdhsa_accum_offset %d" % ((nv + 3) // 4 * 4))
        a.raw("  .amdhsa_group_segment_fixed_size 0")
        a.raw("  .amdhsa_kernarg_size 64")
        a.raw("  .amdhsa_user_sgpr_count 2")
        a.raw("  .amdhsa_user_sgpr_kernarg_segment_ptr 1")
        a.raw("  .amdhsa_system_sgpr_workgroup_id_x 1")
        a.raw(".end_amdhsa_kernel")
    return a.text()

def comb(a, G):
    a.raw(".globl fd_comb_kernel")
    a.raw(".p2align 8")
    a.raw(".type fd_comb_kernel,@function")
    a.label("fd_comb_kernel")
    NS = G // 16
    NA = G // 64
    a("s_cmp_ge_u32 s2, 256")
    a("s_cbranch_scc1 L_comb_end")
    a("s_load_dwordx2 s[4:5], s[0:1], 56")
    a("s_load_dwordx2 s[6:7], s[0:1], 40")
    a("s_mul_i32 s3, s2, %d" % (G * 64))
    a("v_lshlrev_b32 v1, 4, v0")
    a("v_add_u32 v1, s3, v1")
    a("s_lshr_b32 s16, s2, 3")
    a("s_mul_i32 s17, s16, %d" % (G * 8))
    a("s_add_u32 s17, s17, 0x%x" % (32 * 8 * G * 64))
    a("v_lshrrev_b32 v2, 2, v0")
    a("v_lshlrev_b32 v2, 3, v2")
    a("v_add_u32 v2, s17, v2")
    a("v_lshlrev_b32 v3, 3, v0")
    a("v_add_u32 v3, s17, v3")
    a("s_mov_b32 s10, 0x10000000")
    a("s_mov_b32 s11, 0x00020000")
    a("s_mov_b32 s14, 8192")
    a("s_mov_b32 s15, 0x00020000")
    for k in range(1, NS // 4):
        a("s_mov_b32 s%d, %d" % (20 + k, 4096 * k))
    a("s_waitcnt lgkmcnt(0)")
    a("s_mov_b32 s8, s4")
    a("s_and_b32 s9, s5, 0xffff")
    a("s_mov_b32 s12, s6")
    a("s_and_b32 s13, s7, 0xffff")
    vAll = 8
    vOwn = vAll + 2 * NA
    vO = (vOwn + 2 * NS + 3) // 4 * 4
    for k in range(NA):
        a("buffer_load_dwordx2 %s, v3, s[8:11], 0 offen offset:%d" % (vr(vAll + 2 * k, 2), 512 * k))
    for k in range(NS):
        a("buffer_load_dwordx2 %s, v2, s[8:11], 0 offen offset:%d" % (vr(vOwn + 2 * k, 2), 128 * k))
    for k in range(NS):
        so = "0" if k < 4 else "s%d" % (20 + k // 4)
        a("buffer_load_dwordx4 %s, v1, s[8:11], %s offen offset:%d" % (vr(vO + 4 * k, 4), so, 1024 * (k % 4)))
    a("s_waitcnt vmcnt(%d)" % (2 * NS))
    a("v_mov_b32 v4, %s" % vr(vAll))
    for k in range(1, NA):
        a("v_max_f32 v4, v4, %s" % vr(vAll + 2 * k))
    def wave_reduce(reg, tmp, op):
        a("s_nop 1")
        a("%s_dpp %s, %s, %s quad_perm:[1,0,3,2] row_mask:0xf bank_mask:0xf" % (op, vr(reg), vr(reg), vr(reg)))
        a("s_nop 1")
        a("%s_dpp %s, %s, %s quad_perm:[2,3,0,1] row_mask:0xf bank_mask:0xf" % (op, vr(reg), vr(reg), vr(reg)))
        reduce_hi(reg, tmp, op)
    def reduce_hi(reg, tmp, op):
        a("s_nop 1")
        a("%s_dpp %s, %s, %s row_ror:4 row_mask:0xf bank_mask:0xf" % (op, vr(reg), vr(reg), vr(reg)))
        a("s_nop 1")
        a("%s_dpp %s, %s, %s row_ror:8 row_mask:0xf bank_mask:0xf" % (op, vr(reg), vr(reg), vr(reg)))
        a("v_mov_b32 %s, %s" % (vr(tmp), vr(reg)))
        a("s_nop 1")
        a("v_permlane16_swap_b32 %s, %s" % (vr(reg), vr(tmp)))
        a("%s %s, %s, %s" % (op, vr(reg), vr(reg), vr(tmp)))
        a("v_mov_b32 %s, %s" % (vr(tmp), vr(reg)))
        a("s_nop 1")
        a("v_permlane32_swap_b32 %s, %s" % (vr(reg), vr(tmp)))
        a("%s %s, %s, %s" % (op, vr(reg), vr(reg), vr(tmp)))
    wave_reduce(4, 5, "v_max_f32")
    a("v_mov_b32 v6, 0")
    for k in range(NA):
        a("v_sub_f32 v5, %s, v4" % vr(vAll + 2 * k))
        a("v_exp_f32 v5, v5")
        a("s_nop 0")
        a("v_fmac_f32 v6, v5, %s" % vr(vAll + 2 * k + 1))
    wave_reduce(6, 5, "v_add_f32")
    a("s_waitcnt vmcnt(%d)" % NS)
    for k in range(NS):
        a("v_sub_f32 %s, %s, v4" % (vr(vOwn + 2 * k), vr(vOwn + 2 * k)))
    for k in range(NS):
        a("v_exp_f32 %s, %s" % (vr(vOwn + 2 * k), vr(vOwn + 2 * k)))
    a("v_rcp_f32 v6, v6")
    vR = vO + 4 * NS
    for k in range(NS):
        a("s_waitcnt vmcnt(%d)" % (NS - 1 - k))
        for r in range(4):
            if k == 0:
                a("v_mul_f32 %s, %s, %s" % (vr(vR + r), vr(vOwn), vr(vO + r)))
            else:
                a("v_fmac_f32 %s, %s, %s" % (vr(vR + r), vr(vOwn + 2 * k), vr(vO + 4 * k + r)))
    for r in range(4):
        reduce_hi(vR + r, 5, "v_add_f32")
    for r in range(4):
        a("v_mul_f32 %s, %s, v6" % (vr(vR + r), vr(vR + r)))
    a("v_cvt_pk_bf16_f32 %s, %s, %s" % (vr(vR), vr(vR), vr(vR + 1)))
    a("v_cvt_pk_bf16_f32 %s, %s, %s" % (vr(vR + 1), vr(vR + 2), vr(vR + 3)))
    a("s_lshl_b32 s18, s2, 5")
    a("v_lshlrev_b32 v1, 3, v0")
    a("v_add_u32 v1, s18, v1")
    a("v_mov_b32 v2, 0x40000000")
    a("v_cmp_gt_u32 vcc, 4, v0")
    a("s_nop 1")
    a("v_cndmask_b32 v1, v2, v1, vcc")
    a("buffer_store_dwordx2 %s, v1, s[12:15], 0 offen" % vr(vR, 2))
    a.label("L_comb_end")
    a("s_endpgm")
    return vR + 4

if __name__ == "__main__":
    out = sys.argv[1] if len(sys.argv) > 1 else "cdna_kernels/%s.s" % NAME
    kw = {}
    for x in sys.argv[2:]:
        k, v = x.split("=")
        kw[k] = int(v)
    open(out, "w").write(gen(**kw))
```

```python
import sys
sys.path.insert(0, "gen")
NAME = "standalone__paged_block_table_kv_radixattention__decode"
HDR = open("cdna_kernels/%s.s.ref" % NAME).read().split("; Override launch geometry")[0]

class Asm:
    def __init__(self):
        self.lines = []
    def __call__(self, s):
        self.lines.append("    " + s)
    def label(self, s):
        self.lines.append(s + ":")
    def raw(self, s):
        self.lines.append(s)
    def text(self):
        return "\n".join(self.lines) + "\n"

def vr(a, n=1):
    return "v%d" % a if n == 1 else "v[%d:%d]" % (a, a + n - 1)
def sr(a, n=1):
    return "s%d" % a if n == 1 else "s[%d:%d]" % (a, a + n - 1)

KP, VP = 1088, 1056
KSZ, VSZ = 4 * KP, 4 * VP
SLOT = KSZ + VSZ

def gen(G=256, D=4, nt=1, stamp=0, exp=0, nostore=0, nobt=0, stflags='', spec=0):
    NTF = " nt" if nt else ""
    a = Asm()
    a.raw(HDR.rstrip())
    a.raw("; @launch kernel=fd_main_kernel grid=(%d,1,1) block=(256,1,1) lds=%d" % (G, 4 * D * SLOT))
    a.raw("; @launch kernel=fd_comb_kernel grid=(256,1,1) block=(64,1,1) lds=0")
    a.raw('.amdgcn_target "amdgcn-amd-amdhsa--gfx950"')
    a.raw(".text")
    a.raw(".globl fd_main_kernel")
    a.raw(".p2align 8")
    a.raw(".type fd_main_kernel,@function")
    a.label("fd_main_kernel")
    vI, vG = 1, 2
    vBT, vPg = 3, 4
    vKs = 8
    vVs = 12
    vKa, vVa0, vVa1 = 16, 17, 18
    vKa2, vVb0, vVb1 = 19, 20, 21
    vTok, vNinf, vSt, vMl = 22, 23, 24, 25
    vM, vMc, vL, vT, vT2, vMn, vMcn, vAl = 26, 27, 28, 29, 30, 31, 32, 33
    vP = 36
    vPk = 40
    vE = 42
    vS = 44
    vQ = 48
    vAcc = 64
    vK = 96
    vVt = 112
    nvgpr = 128
    sQ, sK, sV, sBT = 4, 6, 8, 10
    sCtxP, sWsP = 12, 14
    sSK, sSV, sSQ, sSW, sSB = 16, 20, 24, 28, 32
    sHead, sCtx, sNp, sLast, sRem, sN, sMaskIt = 36, 37, 38, 39, 40, 41, 42
    sC, sTmp, sTmp2, sIt, sSlot, sOff, sLdsBase, sKD, sM0 = 43, 44, 45, 46, 47, 48, 49, 50, 51
    nst = [0]
    def st():
        if stamp == 2:
            a("s_memrealtime s[%d:%d]" % (64 + 2 * nst[0], 65 + 2 * nst[0])); nst[0] += 1
    a("s_cmp_ge_u32 s2, %d" % G)
    a("s_cbranch_scc1 L_main_end")
    st()
    a("s_load_dwordx8 s[4:11], s[0:1], 0")
    a("s_load_dwordx2 s[12:13], s[0:1], 32")
    a("s_load_dwordx2 s[14:15], s[0:1], 56")
    a("v_lshrrev_b32 v1, 6, v0")
    a("v_and_b32 v0, 63, v0")
    a("v_readfirstlane_b32 %s, v1" % sr(sHead))
    a("v_and_b32 %s, 15, v0" % vr(vI))
    a("v_lshrrev_b32 %s, 4, v0" % vr(vG))
    a("v_mul_u32_u24 %s, %d, v0" % (vr(vPg), G))
    a("v_add_u32 %s, s2, %s" % (vr(vPg), vr(vPg)))
    a("v_lshlrev_b32 %s, 2, %s" % (vr(vBT), vr(vPg)))
    a("s_lshl_b32 %s, %s, 8" % (sr(sTmp), sr(sHead)))
    a("s_mul_i32 %s, %s, %d" % (sr(sLdsBase), sr(sHead), D * SLOT))
    a("v_xor_b32 %s, %s, %s" % (vr(vT), vr(vI), vr(vG)))
    a("v_lshlrev_b32 %s, 4, %s" % (vr(vT), vr(vT)))
    a("v_lshl_add_u32 %s, %s, 10, %s" % (vr(vT), vr(vG), vr(vT)))
    a("v_add_u32 %s, %s, %s" % (vr(vKs), sr(sTmp), vr(vT)))
    for n in range(1, 4):
        a("v_add_u32 %s, %d, %s" % (vr(vKs + n), (4096 - KP) * n, vr(vKs)))
    a("v_and_b32 %s, 1, %s" % (vr(vT), vr(vG)))
    a("v_lshlrev_b32 %s, 3, %s" % (vr(vT), vr(vT)))
    a("v_xor_b32 %s, %s, %s" % (vr(vT), vr(vI), vr(vT)))
    a("v_lshlrev_b32 %s, 4, %s" % (vr(vT), vr(vT)))
    a("v_lshl_add_u32 %s, %s, 12, %s" % (vr(vT), vr(vG), vr(vT)))
    a("v_add_u32 %s, %s, %s" % (vr(vVs), sr(sTmp), vr(vT)))
    for n in range(1, 4):
        a("v_subrev_u32 %s, %d, %s" % (vr(vVs + n), (VP - 1024) * n, vr(vVs)))
    a("v_lshrrev_b32 %s, 2, %s" % (vr(vT), vr(vI)))
    a("v_mul_u32_u24 %s, %d, %s" % (vr(vKa), KP, vr(vT)))
    a("v_and_b32 %s, 3, %s" % (vr(vT), vr(vI)))
    a("v_lshl_add_u32 %s, %s, 8, %s" % (vr(vKa), vr(vT), vr(vKa)))
    a("v_xor_b32 %s, %s, %s" % (vr(vT), vr(vT), vr(vG)))
    a("v_lshl_add_u32 %s, %s, 4, %s" % (vr(vKa), vr(vT), vr(vKa)))
    a("v_add_u32 %s, %s, %s" % (vr(vKa), sr(sLdsBase), vr(vKa)))
    a("v_lshrrev_b32 %s, 2, %s" % (vr(vT), vr(vI)))
    a("v_mul_u32_u24 %s, %d, %s" % (vr(vVa0), VP, vr(vT)))
    a("v_lshl_add_u32 %s, %s, 8, %s" % (vr(vVa0), vr(vG), vr(vVa0)))
    a("v_and_b32 %s, 3, %s" % (vr(vT), vr(vI)))
    a("v_lshl_add_u32 %s, %s, 3, %s" % (vr(vVa0), vr(vT), vr(vVa0)))
    a("v_add_u32 %s, %s, %s" % (vr(vVa0), sr(sLdsBase), vr(vVa0)))
    a("v_add_u32 %s, %d, %s" % (vr(vVa0), KSZ, vr(vVa0)))
    a("v_and_b32 %s, 1, %s" % (vr(vT), vr(vG)))
    a("v_xor_b32 %s, 1, %s" % (vr(vT2), vr(vT)))
    a("v_lshl_add_u32 %s, %s, 7, %s" % (vr(vVa1), vr(vT2), vr(vVa0)))
    a("v_lshl_add_u32 %s, %s, 7, %s" % (vr(vVa0), vr(vT), vr(vVa0)))
    a("v_lshlrev_b32 %s, 2, %s" % (vr(vTok), vr(vG)))
    a("s_lshl_b32 %s, %s, 11" % (sr(sTmp2), sr(sHead)))
    a("v_lshlrev_b32 %s, 8, %s" % (vr(vSt), vr(vI)))
    a("v_lshl_add_u32 %s, %s, 4, %s" % (vr(vSt), vr(vG), vr(vSt)))
    a("v_add_u32 %s, %s, %s" % (vr(vSt), sr(sTmp2), vr(vSt)))
    a("v_mov_b32 %s, 0x40000000" % vr(vAl))
    a("v_cmp_gt_u32 vcc, 8, %s" % vr(vI))
    a("s_mov_b32 %s, 0x3e0293ee" % sr(sC))
    a("s_mov_b32 %s, 0x00020000" % sr(sSB + 3))
    a("v_cndmask_b32 %s, %s, %s, vcc" % (vr(vSt), vr(vAl), vr(vSt)))
    a("s_mov_b32 %s, 16384" % sr(sSB + 2))
    def dmaK():
        for n in range(4):
            a("buffer_load_dwordx4 %s, %s, %s offen offset:%d%s lds" % (vr(vKs + n), sr(sSK, 4), sr(sOff), KP * n, NTF))
    def dmaV():
        for n in range(4):
            a("buffer_load_dwordx4 %s, %s, %s offen offset:%d%s lds" % (vr(vVs + n), sr(sSV, 4), sr(sOff), VP * n, NTF))
    for n in range(4):
        a("v_add_u32 %s, 128, %s" % (vr(vVs + n), vr(vVs + n)))
    for srd, nbytes in ((sSQ, 8192), (sSK, 0x4000000), (sSV, 0x4000080), (sSW, 0x10000000)):
        a("s_mov_b32 %s, 0x%x" % (sr(srd + 2), nbytes))
        a("s_mov_b32 %s, 0x00020000" % sr(srd + 3))
    a("s_lshl_b32 %s, s2, 14" % sr(sOff))
    a("s_mov_b32 m0, %s" % sr(sLdsBase))
    a("s_add_u32 %s, %s, %d" % (sr(sM0), sr(sLdsBase), KSZ))
    a("s_waitcnt lgkmcnt(0)")
    if not nobt: a("s_load_dword %s, %s, 0" % (sr(sCtx), sr(sCtxP, 2)))
    a("s_mov_b32 %s, %s" % (sr(sSB), sr(sBT)))
    a("s_and_b32 %s, %s, 0xffff" % (sr(sSB + 1), sr(sBT + 1)))
    a("buffer_load_dword %s, %s, %s, 0 offen" % (vr(5 if nobt else vBT), vr(vBT), sr(sSB, 4)))
    a("s_mov_b32 %s, %s" % (sr(sSQ), sr(sQ)))
    a("s_and_b32 %s, %s, 0xffff" % (sr(sSQ + 1), sr(sQ + 1)))
    a("s_mov_b32 %s, %s" % (sr(sSK), sr(sK)))
    a("s_and_b32 %s, %s, 0xffff" % (sr(sSK + 1), sr(sK + 1)))
    for j in range(4):
        a("buffer_load_dwordx4 %s, %s, %s, 0 offen offset:%d" % (vr(vQ + 4 * j, 4), vr(vSt), sr(sSQ, 4), 64 * j))
    a("s_sub_u32 %s, %s, 128" % (sr(sSV), sr(sV)))
    a("s_subb_u32 %s, %s, 0" % (sr(sSV + 1), sr(sV + 1)))
    a("s_and_b32 %s, %s, 0xffff" % (sr(sSV + 1), sr(sSV + 1)))
    if spec:
        for k in range(D):
            dmaK()
            a("s_mov_b32 m0, %s" % sr(sM0))
            a("s_add_u32 %s, %s, %d" % (sr(sM0), sr(sM0), VSZ))
            a("s_nop 0")
            dmaV()
            if k < D - 1:
                a("s_mov_b32 m0, %s" % sr(sM0))
                a("s_add_u32 %s, %s, %d" % (sr(sM0), sr(sM0), KSZ))
                a("s_add_u32 %s, %s, %d" % (sr(sOff), sr(sOff), G << 14))
    a("s_mov_b32 %s, %s" % (sr(sSW), sr(sWsP)))
    a("s_and_b32 %s, %s, 0xffff" % (sr(sSW + 1), sr(sWsP + 1)))
    for r in range(32):
        a("v_mov_b32 %s, 0" % vr(vAcc + r))
    a("v_mov_b32 %s, 0xff800000" % vr(vNinf))
    a("v_mov_b32 %s, 0xff800000" % vr(vM))
    a("v_mov_b32 %s, 0xff800000" % vr(vMc))
    a("v_mov_b32 %s, 0" % vr(vL))
    a("v_bfrev_b32 %s, 1" % vr(vAl))
    if nobt: a("s_mov_b32 %s, 50767" % sr(sCtx))
    else: a("s_waitcnt lgkmcnt(0)")
    a("s_mov_b32 %s, %s" % (sr(sTmp2), sr(sCtx)))
    a("s_cmp_lt_i32 %s, 1" % sr(sCtx))
    a("s_cselect_b32 %s, 0x10000, %s" % (sr(sCtx), sr(sCtx)))
    a("s_min_u32 %s, %s, 0x10000" % (sr(sCtx), sr(sCtx)))
    a("s_add_u32 %s, %s, 15" % (sr(sNp), sr(sCtx)))
    a("s_lshr_b32 %s, %s, 4" % (sr(sNp), sr(sNp)))
    a("v_cmp_gt_u32 s[52:53], %s, %s" % (sr(sNp), vr(vPg)))
    if nobt: a("v_mov_b32 %s, %s" % (vr(vBT), vr(vPg)))
    else: a("s_waitcnt vmcnt(%d)" % (8 * D + 4 if spec else 4))
    st()
    a("v_cmp_gt_i32 vcc, 0, %s" % vr(vBT))
    a("v_add_u32 %s, 4096, %s" % (vr(vT), vr(vBT)))
    a("s_mov_b32 %s, 0" % sr(sIt))
    a("v_cndmask_b32 %s, %s, %s, vcc" % (vr(vBT), vr(vBT), vr(vT)))
    if spec:
        a("v_cmp_ne_u32 vcc, %s, %s" % (vr(vBT), vr(vPg)))
    a("v_lshlrev_b32 %s, 14, %s" % (vr(vBT), vr(vBT)))
    a("v_cndmask_b32 %s, %s, %s, s[52:53]" % (vr(vBT), vr(vAl), vr(vBT)))
    a("s_mov_b32 %s, %s" % (sr(sM0), sr(sLdsBase)))
    if spec:
        a("s_and_b32 %s, vcc_lo, s52" % sr(sTmp))
        a("s_and_b32 %s, %s, %d" % (sr(sTmp), sr(sTmp), (1 << D) - 1))
        a("s_cbranch_scc0 L_specok")
        a("s_waitcnt vmcnt(0)")
    a.label("L_pro")
    a("v_readlane_b32 %s, %s, %s" % (sr(sOff), vr(vBT), sr(sIt)))
    a("s_mov_b32 m0, %s" % sr(sM0))
    a("s_add_u32 %s, %s, %d" % (sr(sTmp), sr(sM0), KSZ))
    a("s_add_u32 %s, %s, %d" % (sr(sM0), sr(sM0), SLOT))
    a("s_add_u32 %s, %s, 1" % (sr(sIt), sr(sIt)))
    a("s_nop 0")
    dmaK()
    a("s_mov_b32 m0, %s" % sr(sTmp))
    a("s_cmp_lt_u32 %s, %d" % (sr(sIt), D))
    dmaV()
    a("s_cbranch_scc1 L_pro")
    a.label("L_specok")
    a("s_sub_u32 %s, %s, 1" % (sr(sLast), sr(sNp)))
    a("s_lshl_b32 %s, %s, 4" % (sr(sTmp), sr(sLast)))
    a("s_sub_u32 %s, %s, %s" % (sr(sRem), sr(sCtx), sr(sTmp)))
    a("s_add_u32 %s, %s, %d" % (sr(sN), sr(sNp), G - 1))
    a("s_sub_u32 %s, %s, s2" % (sr(sN), sr(sN)))
    a("s_lshr_b32 %s, %s, %d" % (sr(sN), sr(sN), G.bit_length() - 1))
    a("s_and_b32 %s, %s, %d" % (sr(sTmp), sr(sLast), G - 1))
    a("s_sub_u32 %s, %s, 1" % (sr(sMaskIt), sr(sN)))
    a("s_cmp_eq_u32 %s, s2" % sr(sTmp))
    a("s_cselect_b32 %s, %s, -1" % (sr(sMaskIt), sr(sMaskIt)))
    a("s_mov_b32 %s, 0" % sr(sIt))
    a("s_mov_b32 %s, 0" % sr(sSlot))
    a("s_mov_b32 %s, %d" % (sr(sKD), D))
    a("s_cmp_gt_i32 %s, 0" % sr(sTmp2))
    a("s_cbranch_scc1 L_qok")
    a("s_waitcnt vmcnt(%d)" % (8 * D))
    for r in range(16):
        a("v_mov_b32 %s, 0" % vr(vQ + r))
    a.label("L_qok")
    a("s_cmp_eq_u32 %s, 0" % sr(sN))
    a("s_cbranch_scc1 L_epi")
    a.raw(".p2align 6")
    a.label("L_loop")
    a("v_add_u32 %s, %s, %s" % (vr(vKa2), sr(sSlot), vr(vKa)))
    a("v_add_u32 %s, %s, %s" % (vr(vVb0), sr(sSlot), vr(vVa0)))
    a("v_add_u32 %s, %s, %s" % (vr(vVb1), sr(sSlot), vr(vVa1)))
    a("v_readlane_b32 %s, %s, %s" % (sr(sOff), vr(vBT), sr(sKD)))
    a("s_add_u32 %s, %s, %s" % (sr(sM0), sr(sLdsBase), sr(sSlot)))
    a("s_mov_b32 m0, %s" % sr(sM0))
    a("s_waitcnt vmcnt(%d)" % (8 * D - 4))
    if exp < 2:
      for j in range(4):
        a("ds_read_b128 %s, %s offset:%d" % (vr(vK + 4 * j, 4), vr(vKa2), 64 * j))
      for j in range(4):
        a("s_waitcnt lgkmcnt(%d)" % (3 - j))
        c = "0" if j == 0 else vr(vS, 4)
        a("v_mfma_f32_16x16x32_bf16 %s, %s, %s, %s" % (vr(vS, 4), vr(vK + 4 * j, 4), vr(vQ + 4 * j, 4), c))
    dmaK()
    a("s_add_u32 %s, %s, %d" % (sr(sM0), sr(sM0), KSZ))
    a("s_waitcnt vmcnt(%d)" % (8 * D - 4))
    if exp < 2:
      for b in range(8):
        a("ds_read_b64_tr_b16 %s, %s offset:%d" % (vr(vVt + 2 * b, 2), vr(vVb0 if b < 4 else vVb1), 32 * (b & 3)))
    a("s_mov_b32 m0, %s" % sr(sM0))
    if exp: a("s_branch L_skipc")
    a("s_cmp_lg_u32 %s, %s" % (sr(sIt), sr(sMaskIt)))
    a("s_cbranch_scc1 L_nomask")
    for r in range(4):
        a("v_add_u32 %s, %d, %s" % (vr(vT), r, vr(vTok)))
        a("v_cmp_gt_u32 vcc, %s, %s" % (sr(sRem), vr(vT)))
        a("s_nop 1")
        a("v_cndmask_b32 %s, %s, %s, vcc" % (vr(vS + r), vr(vNinf), vr(vS + r)))
    a.label("L_nomask")
    a("v_max3_f32 %s, %s, %s, %s" % (vr(vT), vr(vS), vr(vS + 1), vr(vS + 2)))
    a("v_max3_f32 %s, %s, %s, %s" % (vr(vT), vr(vT), vr(vS + 3), vr(vM)))
    a("v_mov_b32 %s, %s" % (vr(vT2), vr(vT)))
    a("s_nop 1")
    a("v_permlane32_swap_b32 %s, %s" % (vr(vT), vr(vT2)))
    a("v_max_f32 %s, %s, %s" % (vr(vT), vr(vT), vr(vT2)))
    a("v_mov_b32 %s, %s" % (vr(vT2), vr(vT)))
    a("s_nop 1")
    a("v_permlane16_swap_b32 %s, %s" % (vr(vT), vr(vT2)))
    a("v_max_f32 %s, %s, %s" % (vr(vMn), vr(vT), vr(vT2)))
    a("v_cmp_gt_f32 vcc, %s, %s" % (vr(vMn), vr(vM)))
    a("v_mul_f32 %s, %s, %s" % (vr(vMcn), sr(sC), vr(vMn)))
    a("s_cbranch_vccz L_noresc")
    a("v_sub_f32 %s, %s, %s" % (vr(vAl), vr(vMc), vr(vMcn)))
    a("v_exp_f32 %s, %s" % (vr(vAl), vr(vAl)))
    a("v_mov_b32 %s, %s" % (vr(vM), vr(vMn)))
    a("v_mov_b32 %s, %s" % (vr(vMc), vr(vMcn)))
    a("v_mul_f32 %s, %s, %s" % (vr(vL), vr(vL), vr(vAl)))
    for r in range(32):
        a("v_mul_f32 %s, %s, %s" % (vr(vAcc + r), vr(vAcc + r), vr(vAl)))
    a.label("L_noresc")
    for r in range(4):
        a("v_fma_f32 %s, %s, %s, -%s" % (vr(vP + r), vr(vS + r), sr(sC), vr(vMc)))
    for r in range(4):
        a("v_exp_f32 %s, %s" % (vr(vP + r), vr(vP + r)))
    a("s_nop 0")
    a("v_cvt_pk_bf16_f32 %s, %s, %s" % (vr(vPk), vr(vP), vr(vP + 1)))
    a("v_cvt_pk_bf16_f32 %s, %s, %s" % (vr(vPk + 1), vr(vP + 2), vr(vP + 3)))
    a("v_add_f32 %s, %s, %s" % (vr(vT), vr(vP), vr(vP + 1)))
    a("v_add_f32 %s, %s, %s" % (vr(vT2), vr(vP + 2), vr(vP + 3)))
    a("s_waitcnt lgkmcnt(0)")
    for b in range(8):
        a("v_mfma_f32_16x16x16_bf16 %s, %s, %s, %s" % (vr(vAcc + 4 * b, 4), vr(vVt + 2 * b, 2), vr(vPk, 2), vr(vAcc + 4 * b, 4)))
    a.label("L_skipc")
    a("s_waitcnt lgkmcnt(0)")
    a("s_add_u32 %s, %s, %d" % (sr(sSlot), sr(sSlot), SLOT))
    dmaV()
    a("v_add_f32 %s, %s, %s" % (vr(vT), vr(vT), vr(vT2)))
    a("v_add_f32 %s, %s, %s" % (vr(vL), vr(vL), vr(vT)))
    a("s_cmp_eq_u32 %s, %d" % (sr(sSlot), D * SLOT))
    a("s_cselect_b32 %s, 0, %s" % (sr(sSlot), sr(sSlot)))
    a("s_add_u32 %s, %s, 1" % (sr(sKD), sr(sKD)))
    a("s_add_u32 %s, %s, 1" % (sr(sIt), sr(sIt)))
    a("s_cmp_lt_u32 %s, %s" % (sr(sIt), sr(sN)))
    a("s_cbranch_scc1 L_loop")
    a.label("L_epi")
    st()
    a("s_lshl_b32 %s, %s, 3" % (sr(sTmp), sr(sHead)))
    a("v_add_u32 %s, %s, %s" % (vr(vSt), sr(sTmp), vr(vI)))
    a("v_mul_u32_u24 %s, %d, %s" % (vr(vMl), G, vr(vSt)))
    a("v_lshlrev_b32 %s, 9, %s" % (vr(vSt), vr(vMl)))
    a("s_lshl_b32 %s, s2, 6" % sr(sTmp))
    a("v_lshl_add_u32 %s, %s, 4, %s" % (vr(vSt), vr(vG), vr(vSt)))
    a("v_add_u32 %s, %s, %s" % (vr(vSt), sr(sTmp), vr(vSt)))
    a("v_cmp_gt_u32 vcc, 8, %s" % vr(vI))
    a("v_bfrev_b32 %s, 2" % vr(vAl))
    a("v_mov_b32 %s, %s" % (vr(vT2), vr(vL)))
    a("v_cndmask_b32 %s, %s, %s, vcc" % (vr(vSt), vr(vAl), vr(vSt)))
    for b in range(8):
        a("s_mov_b32 %s, %d" % (sr(sTmp), b * G * 64))
        if not nostore: a("buffer_store_dwordx4 %s, %s, %s, %s offen %s" % (vr(vAcc + 4 * b, 4), vr(vSt), sr(sSW, 4), sr(sTmp), stflags))
    a("v_permlane32_swap_b32 %s, %s" % (vr(vL), vr(vT2)))
    a("v_add_f32 %s, %s, %s" % (vr(vL), vr(vL), vr(vT2)))
    a("v_mov_b32 %s, %s" % (vr(vT2), vr(vL)))
    a("v_add_u32 %s, s2, %s" % (vr(vMl), vr(vMl)))
    a("v_lshlrev_b32 %s, 3, %s" % (vr(vMl), vr(vMl)))
    a("v_permlane16_swap_b32 %s, %s" % (vr(vL), vr(vT2)))
    a("v_add_f32 %s, %s, %s" % (vr(vE + 1), vr(vL), vr(vT2)))
    a("v_add_u32 %s, 0x%x, %s" % (vr(vMl), 32 * 8 * G * 64, vr(vMl)))
    a("v_cmp_gt_u32 vcc, 8, v0")
    a("v_mov_b32 %s, %s" % (vr(vE), vr(vMc)))
    a("s_nop 0")
    a("v_cndmask_b32 %s, %s, %s, vcc" % (vr(vMl), vr(vAl), vr(vMl)))
    a("buffer_store_dwordx2 %s, %s, %s, 0 offen" % (vr(vE, 2), vr(vMl), sr(sSW, 4)))
    if stamp == 2:
        st()
        a("s_waitcnt vmcnt(0)")
        st()
        a("s_waitcnt lgkmcnt(0)")
        a("s_lshl_b32 s96, s2, 2")
        a("s_add_u32 s96, s96, %s" % sr(sHead))
        a("s_lshl_b32 s96, s96, 6")
        a("v_mov_b32 v90, 0x8000000")
        for i in range(nst[0]):
            a("v_mov_b32 v91, s%d" % (64 + 2 * i))
            a("buffer_store_dword v91, v90, %s, s96 offen offset:%d" % (sr(sSW, 4), 4 * i))
            a("s_nop 1")
    a.label("L_main_end")
    a("s_endpgm")
    nv2 = comb(a, G)
    a.raw('.section .rodata,"a"')
    for nm, nv in (("fd_main_kernel", nvgpr), ("fd_comb_kernel", nv2)):
        a.raw(".p2align 6")
        a.raw(".amdhsa_kernel %s" % nm)
        a.raw("  .amdhsa_next_free_vgpr %d" % nv)
        a.raw("  .amdhsa_next_free_sgpr %d" % (100 if stamp else 64))
        a.raw("  .amdhsa_accum_offset %d" % ((nv + 3) // 4 * 4))
        a.raw("  .amdhsa_group_segment_fixed_size 0")
        a.raw("  .amdhsa_kernarg_size 64")
        a.raw("  .amdhsa_user_sgpr_count 2")
        a.raw("  .amdhsa_user_sgpr_kernarg_segment_ptr 1")
        a.raw("  .amdhsa_system_sgpr_workgroup_id_x 1")
        a.raw(".end_amdhsa_kernel")
    return a.text()

def comb(a, G):
    a.raw(".globl fd_comb_kernel")
    a.raw(".p2align 8")
    a.raw(".type fd_comb_kernel,@function")
    a.label("fd_comb_kernel")
    NS = G // 16
    NA = G // 64
    a("s_cmp_ge_u32 s2, 256")
    a("s_cbranch_scc1 L_comb_end")
    a("s_load_dwordx2 s[4:5], s[0:1], 56")
    a("s_load_dwordx2 s[6:7], s[0:1], 40")
    a("s_mul_i32 s3, s2, %d" % (G * 64))
    a("v_lshlrev_b32 v1, 4, v0")
    a("v_add_u32 v1, s3, v1")
    a("s_lshr_b32 s16, s2, 3")
    a("s_mul_i32 s17, s16, %d" % (G * 8))
    a("s_add_u32 s17, s17, 0x%x" % (32 * 8 * G * 64))
    a("v_lshrrev_b32 v2, 2, v0")
    a("v_lshlrev_b32 v2, 3, v2")
    a("v_add_u32 v2, s17, v2")
    a("v_lshlrev_b32 v3, 3, v0")
    a("v_add_u32 v3, s17, v3")
    a("s_mov_b32 s10, 0x10000000")
    a("s_mov_b32 s11, 0x00020000")
    a("s_mov_b32 s14, 8192")
    a("s_mov_b32 s15, 0x00020000")
    for k in range(1, NS // 4):
        a("s_mov_b32 s%d, %d" % (20 + k, 4096 * k))
    a("s_waitcnt lgkmcnt(0)")
    a("s_mov_b32 s8, s4")
    a("s_and_b32 s9, s5, 0xffff")
    a("s_mov_b32 s12, s6")
    a("s_and_b32 s13, s7, 0xffff")
    vAll = 8
    vOwn = vAll + 2 * NA
    vO = (vOwn + 2 * NS + 3) // 4 * 4
    for k in range(NA):
        a("buffer_load_dwordx2 %s, v3, s[8:11], 0 offen offset:%d" % (vr(vAll + 2 * k, 2), 512 * k))
    for k in range(NS):
        a("buffer_load_dwordx2 %s, v2, s[8:11], 0 offen offset:%d" % (vr(vOwn + 2 * k, 2), 128 * k))
    for k in range(NS):
        so = "0" if k < 4 else "s%d" % (20 + k // 4)
        a("buffer_load_dwordx4 %s, v1, s[8:11], %s offen offset:%d" % (vr(vO + 4 * k, 4), so, 1024 * (k % 4)))
    a("s_waitcnt vmcnt(%d)" % (2 * NS))
    a("v_mov_b32 v4, %s" % vr(vAll))
    for k in range(1, NA):
        a("v_max_f32 v4, v4, %s" % vr(vAll + 2 * k))
    def wave_reduce(reg, tmp, op):
        a("s_nop 1")
        a("%s_dpp %s, %s, %s quad_perm:[1,0,3,2] row_mask:0xf bank_mask:0xf" % (op, vr(reg), vr(reg), vr(reg)))
        a("s_nop 1")
        a("%s_dpp %s, %s, %s quad_perm:[2,3,0,1] row_mask:0xf bank_mask:0xf" % (op, vr(reg), vr(reg), vr(reg)))
        reduce_hi(reg, tmp, op)
    def reduce_hi(reg, tmp, op):
        a("s_nop 1")
        a("%s_dpp %s, %s, %s row_ror:4 row_mask:0xf bank_mask:0xf" % (op, vr(reg), vr(reg), vr(reg)))
        a("s_nop 1")
        a("%s_dpp %s, %s, %s row_ror:8 row_mask:0xf bank_mask:0xf" % (op, vr(reg), vr(reg), vr(reg)))
        a("v_mov_b32 %s, %s" % (vr(tmp), vr(reg)))
        a("s_nop 1")
        a("v_permlane16_swap_b32 %s, %s" % (vr(reg), vr(tmp)))
        a("%s %s, %s, %s" % (op, vr(reg), vr(reg), vr(tmp)))
        a("v_mov_b32 %s, %s" % (vr(tmp), vr(reg)))
        a("s_nop 1")
        a("v_permlane32_swap_b32 %s, %s" % (vr(reg), vr(tmp)))
        a("%s %s, %s, %s" % (op, vr(reg), vr(reg), vr(tmp)))
    wave_reduce(4, 5, "v_max_f32")
    a("v_mov_b32 v6, 0")
    for k in range(NA):
        a("v_sub_f32 v5, %s, v4" % vr(vAll + 2 * k))
        a("v_exp_f32 v5, v5")
        a("s_nop 0")
        a("v_fmac_f32 v6, v5, %s" % vr(vAll + 2 * k + 1))
    wave_reduce(6, 5, "v_add_f32")
    a("s_waitcnt vmcnt(%d)" % NS)
    for k in range(NS):
        a("v_sub_f32 %s, %s, v4" % (vr(vOwn + 2 * k), vr(vOwn + 2 * k)))
    for k in range(NS):
        a("v_exp_f32 %s, %s" % (vr(vOwn + 2 * k), vr(vOwn + 2 * k)))
    a("v_rcp_f32 v6, v6")
    vR = vO + 4 * NS
    for k in range(NS):
        a("s_waitcnt vmcnt(%d)" % (NS - 1 - k))
        for r in range(4):
            if k == 0:
                a("v_mul_f32 %s, %s, %s" % (vr(vR + r), vr(vOwn), vr(vO + r)))
            else:
                a("v_fmac_f32 %s, %s, %s" % (vr(vR + r), vr(vOwn + 2 * k), vr(vO + 4 * k + r)))
    for r in range(4):
        reduce_hi(vR + r, 5, "v_add_f32")
    for r in range(4):
        a("v_mul_f32 %s, %s, v6" % (vr(vR + r), vr(vR + r)))
    a("v_cvt_pk_bf16_f32 %s, %s, %s" % (vr(vR), vr(vR), vr(vR + 1)))
    a("v_cvt_pk_bf16_f32 %s, %s, %s" % (vr(vR + 1), vr(vR + 2), vr(vR + 3)))
    a("s_lshl_b32 s18, s2, 5")
    a("v_lshlrev_b32 v1, 3, v0")
    a("v_add_u32 v1, s18, v1")
    a("v_mov_b32 v2, 0x40000000")
    a("v_cmp_gt_u32 vcc, 4, v0")
    a("s_nop 1")
    a("v_cndmask_b32 v1, v2, v1, vcc")
    a("buffer_store_dwordx2 %s, v1, s[12:15], 0 offen" % vr(vR, 2))
    a.label("L_comb_end")
    a("s_endpgm")
    return vR + 4

if __name__ == "__main__":
    out = sys.argv[1] if len(sys.argv) > 1 else "cdna_kernels/%s.s" % NAME
    kw = {}
    for x in sys.argv[2:]:
        k, v = x.split("=")
        kw[k] = int(v) if v.lstrip('-').isdigit() else v.replace("+", " ")
    open(out, "w").write(gen(**kw))
```

```python
import sys
sys.path.insert(0, "gen")
NAME = "standalone__paged_block_table_kv_radixattention__decode"
HDR = open("cdna_kernels/%s.s.ref" % NAME).read().split("; Override launch geometry")[0]

class Asm:
    def __init__(self):
        self.lines = []
    def __call__(self, s):
        self.lines.append("    " + s)
    def label(self, s):
        self.lines.append(s + ":")
    def raw(self, s):
        self.lines.append(s)
    def text(self):
        return "\n".join(self.lines) + "\n"

def vr(a, n=1):
    return "v%d" % a if n == 1 else "v[%d:%d]" % (a, a + n - 1)
def sr(a, n=1):
    return "s%d" % a if n == 1 else "s[%d:%d]" % (a, a + n - 1)

KP, VP = 1088, 1056
KSZ, VSZ = 4 * KP, 4 * VP
SLOT = KSZ + VSZ

def gen(G=256, D=4, nt=1, stamp=0, exp=0, nostore=0, nobt=0, stflags='', spec=1, bal=1):
    NTF = " nt" if nt else ""
    a = Asm()
    a.raw(HDR.rstrip())
    a.raw("; @launch kernel=fd_main_kernel grid=(%d,1,1) block=(256,1,1) lds=%d" % (G, 4 * D * SLOT))
    a.raw("; @launch kernel=fd_comb_kernel grid=(256,1,1) block=(64,1,1) lds=0")
    a.raw('.amdgcn_target "amdgcn-amd-amdhsa--gfx950"')
    a.raw(".text")
    a.raw(".globl fd_main_kernel")
    a.raw(".p2align 8")
    a.raw(".type fd_main_kernel,@function")
    a.label("fd_main_kernel")
    vI, vG = 1, 2
    vBT, vPg = 3, 4
    vKs = 8
    vVs = 12
    vKa, vVa0, vVa1 = 16, 17, 18
    vKa2, vVb0, vVb1 = 19, 20, 21
    vTok, vNinf, vSt, vMl = 22, 23, 24, 25
    vM, vMc, vL, vT, vT2, vMn, vMcn, vAl = 26, 27, 28, 29, 30, 31, 32, 33
    vP = 36
    vPk = 40
    vE = 42
    vS = 44
    vQ = 48
    vAcc = 64
    vK = 96
    vVt = 112
    nvgpr = 128
    sQ, sK, sV, sBT = 4, 6, 8, 10
    sCtxP, sWsP = 12, 14
    sSK, sSV, sSQ, sSW, sSB = 16, 20, 24, 28, 32
    sHead, sCtx, sNp, sLast, sRem, sN, sMaskIt = 36, 37, 38, 39, 40, 41, 42
    sC, sTmp, sTmp2, sIt, sSlot, sOff, sLdsBase, sKD, sM0 = 43, 44, 45, 46, 47, 48, 49, 50, 51
    sE, sR, sF, sX = 54, 55, 56, 57
    nst = [0]
    def st():
        if stamp == 2:
            a("s_memrealtime s[%d:%d]" % (64 + 2 * nst[0], 65 + 2 * nst[0])); nst[0] += 1
    a("s_cmp_ge_u32 s2, %d" % G)
    a("s_cbranch_scc1 L_main_end")
    st()
    a("s_load_dwordx8 s[4:11], s[0:1], 0")
    a("s_load_dwordx2 s[12:13], s[0:1], 32")
    a("s_load_dwordx2 s[14:15], s[0:1], 56")
    a("v_lshrrev_b32 v1, 6, v0")
    a("v_and_b32 v0, 63, v0")
    a("v_readfirstlane_b32 %s, v1" % sr(sHead))
    a("v_and_b32 %s, 15, v0" % vr(vI))
    a("v_lshrrev_b32 %s, 4, v0" % vr(vG))
    a("s_sub_u32 %s, s2, %s" % (sr(sTmp), sr(sHead)))
    a("s_and_b32 %s, %s, 3" % (sr(sTmp), sr(sTmp)))
    a("s_sub_u32 %s, s2, %s" % (sr(sE), sr(sTmp)))
    a("s_and_b32 %s, %s, 255" % (sr(sE), sr(sE)))
    a("s_lshl_b32 %s, %s, 8" % (sr(sTmp), sr(sTmp)))
    a("s_add_u32 %s, %s, %s" % (sr(sE), sr(sE), sr(sTmp)))
    a("s_lshr_b32 %s, %s, 2" % (sr(sR), sr(sE)))
    a("v_mov_b32 %s, s2" % vr(vPg))
    a("v_mov_b32 %s, %s" % (vr(vT), sr(sR)))
    a("v_cmp_eq_u32 vcc, 1, %s" % vr(vG))
    a("v_cndmask_b32 %s, %s, %s, vcc" % (vr(vPg), vr(vPg), vr(vT)))
    a("v_lshl_add_u32 %s, %s, 8, %s" % (vr(vPg), vr(vI), vr(vPg)))
    a("v_lshlrev_b32 %s, 2, %s" % (vr(vBT), vr(vPg)))
    a("s_lshl_b32 %s, %s, 8" % (sr(sTmp), sr(sHead)))
    a("s_mul_i32 %s, %s, %d" % (sr(sLdsBase), sr(sHead), D * SLOT))
    a("v_xor_b32 %s, %s, %s" % (vr(vT), vr(vI), vr(vG)))
    a("v_lshlrev_b32 %s, 4, %s" % (vr(vT), vr(vT)))
    a("v_lshl_add_u32 %s, %s, 10, %s" % (vr(vT), vr(vG), vr(vT)))
    a("v_add_u32 %s, %s, %s" % (vr(vKs), sr(sTmp), vr(vT)))
    for n in range(1, 4):
        a("v_add_u32 %s, %d, %s" % (vr(vKs + n), (4096 - KP) * n, vr(vKs)))
    a("v_and_b32 %s, 1, %s" % (vr(vT), vr(vG)))
    a("v_lshlrev_b32 %s, 3, %s" % (vr(vT), vr(vT)))
    a("v_xor_b32 %s, %s, %s" % (vr(vT), vr(vI), vr(vT)))
    a("v_lshlrev_b32 %s, 4, %s" % (vr(vT), vr(vT)))
    a("v_lshl_add_u32 %s, %s, 12, %s" % (vr(vT), vr(vG), vr(vT)))
    a("v_add_u32 %s, %s, %s" % (vr(vVs), sr(sTmp), vr(vT)))
    for n in range(1, 4):
        a("v_subrev_u32 %s, %d, %s" % (vr(vVs + n), (VP - 1024) * n, vr(vVs)))
    a("v_lshrrev_b32 %s, 2, %s" % (vr(vT), vr(vI)))
    a("v_mul_u32_u24 %s, %d, %s" % (vr(vKa), KP, vr(vT)))
    a("v_and_b32 %s, 3, %s" % (vr(vT), vr(vI)))
    a("v_lshl_add_u32 %s, %s, 8, %s" % (vr(vKa), vr(vT), vr(vKa)))
    a("v_xor_b32 %s, %s, %s" % (vr(vT), vr(vT), vr(vG)))
    a("v_lshl_add_u32 %s, %s, 4, %s" % (vr(vKa), vr(vT), vr(vKa)))
    a("v_add_u32 %s, %s, %s" % (vr(vKa), sr(sLdsBase), vr(vKa)))
    a("v_lshrrev_b32 %s, 2, %s" % (vr(vT), vr(vI)))
    a("v_mul_u32_u24 %s, %d, %s" % (vr(vVa0), VP, vr(vT)))
    a("v_lshl_add_u32 %s, %s, 8, %s" % (vr(vVa0), vr(vG), vr(vVa0)))
    a("v_and_b32 %s, 3, %s" % (vr(vT), vr(vI)))
    a("v_lshl_add_u32 %s, %s, 3, %s" % (vr(vVa0), vr(vT), vr(vVa0)))
    a("v_add_u32 %s, %s, %s" % (vr(vVa0), sr(sLdsBase), vr(vVa0)))
    a("v_add_u32 %s, %d, %s" % (vr(vVa0), KSZ, vr(vVa0)))
    a("v_and_b32 %s, 1, %s" % (vr(vT), vr(vG)))
    a("v_xor_b32 %s, 1, %s" % (vr(vT2), vr(vT)))
    a("v_lshl_add_u32 %s, %s, 7, %s" % (vr(vVa1), vr(vT2), vr(vVa0)))
    a("v_lshl_add_u32 %s, %s, 7, %s" % (vr(vVa0), vr(vT), vr(vVa0)))
    a("v_lshlrev_b32 %s, 2, %s" % (vr(vTok), vr(vG)))
    a("s_lshl_b32 %s, %s, 11" % (sr(sTmp2), sr(sHead)))
    a("v_lshlrev_b32 %s, 8, %s" % (vr(vSt), vr(vI)))
    a("v_lshl_add_u32 %s, %s, 4, %s" % (vr(vSt), vr(vG), vr(vSt)))
    a("v_add_u32 %s, %s, %s" % (vr(vSt), sr(sTmp2), vr(vSt)))
    a("v_mov_b32 %s, 0x40000000" % vr(vAl))
    a("v_cmp_gt_u32 vcc, 8, %s" % vr(vI))
    a("s_mov_b32 %s, 0x3e0293ee" % sr(sC))
    a("s_mov_b32 %s, 0x00020000" % sr(sSB + 3))
    a("v_cndmask_b32 %s, %s, %s, vcc" % (vr(vSt), vr(vAl), vr(vSt)))
    a("s_mov_b32 %s, 16384" % sr(sSB + 2))
    def dmaK():
        for n in range(4):
            a("buffer_load_dwordx4 %s, %s, %s offen offset:%d%s lds" % (vr(vKs + n), sr(sSK, 4), sr(sOff), KP * n, NTF))
    def dmaV():
        for n in range(4):
            a("buffer_load_dwordx4 %s, %s, %s offen offset:%d%s lds" % (vr(vVs + n), sr(sSV, 4), sr(sOff), VP * n, NTF))
    for n in range(4):
        a("v_add_u32 %s, 128, %s" % (vr(vVs + n), vr(vVs + n)))
    for srd, nbytes in ((sSQ, 8192), (sSK, 0x4000000), (sSV, 0x4000080), (sSW, 0x10000000)):
        a("s_mov_b32 %s, 0x%x" % (sr(srd + 2), nbytes))
        a("s_mov_b32 %s, 0x00020000" % sr(srd + 3))
    a("s_lshl_b32 %s, s2, 14" % sr(sOff))
    a("s_mov_b32 m0, %s" % sr(sLdsBase))
    a("s_add_u32 %s, %s, %d" % (sr(sM0), sr(sLdsBase), KSZ))
    a("s_waitcnt lgkmcnt(0)")
    if not nobt: a("s_load_dword %s, %s, 0" % (sr(sCtx), sr(sCtxP, 2)))
    a("s_mov_b32 %s, %s" % (sr(sSB), sr(sBT)))
    a("s_and_b32 %s, %s, 0xffff" % (sr(sSB + 1), sr(sBT + 1)))
    a("buffer_load_dword %s, %s, %s, 0 offen" % (vr(5 if nobt else vBT), vr(vBT), sr(sSB, 4)))
    a("s_mov_b32 %s, %s" % (sr(sSQ), sr(sQ)))
    a("s_and_b32 %s, %s, 0xffff" % (sr(sSQ + 1), sr(sQ + 1)))
    a("s_mov_b32 %s, %s" % (sr(sSK), sr(sK)))
    a("s_and_b32 %s, %s, 0xffff" % (sr(sSK + 1), sr(sK + 1)))
    for j in range(4):
        a("buffer_load_dwordx4 %s, %s, %s, 0 offen offset:%d" % (vr(vQ + 4 * j, 4), vr(vSt), sr(sSQ, 4), 64 * j))
    a("s_sub_u32 %s, %s, 128" % (sr(sSV), sr(sV)))
    a("s_subb_u32 %s, %s, 0" % (sr(sSV + 1), sr(sV + 1)))
    a("s_and_b32 %s, %s, 0xffff" % (sr(sSV + 1), sr(sSV + 1)))
    if spec:
        for k in range(D):
            dmaK()
            a("s_mov_b32 m0, %s" % sr(sM0))
            a("s_add_u32 %s, %s, %d" % (sr(sM0), sr(sM0), VSZ))
            a("s_nop 0")
            dmaV()
            if k < D - 1:
                a("s_mov_b32 m0, %s" % sr(sM0))
                a("s_add_u32 %s, %s, %d" % (sr(sM0), sr(sM0), KSZ))
                a("s_add_u32 %s, %s, %d" % (sr(sOff), sr(sOff), G << 14))
    a("s_mov_b32 %s, %s" % (sr(sSW), sr(sWsP)))
    a("s_and_b32 %s, %s, 0xffff" % (sr(sSW + 1), sr(sWsP + 1)))
    for r in range(32):
        a("v_mov_b32 %s, 0" % vr(vAcc + r))
    a("v_mov_b32 %s, 0xff800000" % vr(vNinf))
    a("v_mov_b32 %s, 0xff800000" % vr(vM))
    a("v_mov_b32 %s, 0xff800000" % vr(vMc))
    a("v_mov_b32 %s, 0" % vr(vL))
    a("v_bfrev_b32 %s, 1" % vr(vAl))
    if nobt: a("s_mov_b32 %s, 50767" % sr(sCtx))
    else: a("s_waitcnt lgkmcnt(0)")
    a("s_mov_b32 %s, %s" % (sr(sTmp2), sr(sCtx)))
    a("s_cmp_lt_i32 %s, 1" % sr(sCtx))
    a("s_cselect_b32 %s, 0x10000, %s" % (sr(sCtx), sr(sCtx)))
    a("s_min_u32 %s, %s, 0x10000" % (sr(sCtx), sr(sCtx)))
    a("s_add_u32 %s, %s, 15" % (sr(sNp), sr(sCtx)))
    a("s_lshr_b32 %s, %s, 4" % (sr(sNp), sr(sNp)))
    a("s_lshr_b32 %s, %s, 8" % (sr(sF), sr(sNp)))
    a("s_and_b32 %s, %s, 255" % (sr(sTmp), sr(sNp)))
    a("s_sub_u32 %s, %s, 1" % (sr(sLast), sr(sNp)))
    a("s_lshl_b32 %s, %s, 4" % (sr(sRem), sr(sLast)))
    a("s_sub_u32 %s, %s, %s" % (sr(sRem), sr(sCtx), sr(sRem)))
    a("s_cmp_lt_u32 %s, %s" % (sr(sR), sr(sTmp)))
    a("s_addc_u32 %s, %s, 0" % (sr(sN), sr(sF)))
    a("s_add_u32 %s, %s, 16" % (sr(sX), sr(sF)))
    a("v_cmp_gt_u32 s[52:53], %s, v0" % sr(sN))
    a("v_lshl_add_u32 %s, v0, 8, s2" % vr(vT2))
    a("s_lshl_b32 %s, %s, 8" % (sr(sTmp), sr(sF)))
    a("s_add_u32 %s, %s, %s" % (sr(sTmp), sr(sTmp), sr(sR)))
    a("v_cmp_eq_u32 s[58:59], %s, v0" % sr(sF))
    a("v_mov_b32 %s, %s" % (vr(vT), sr(sTmp)))
    a("v_cndmask_b32 %s, %s, %s, s[58:59]" % (vr(vPg), vr(vPg), vr(vT)))
    a("s_mov_b32 %s, 0" % sr(sIt))
    a("s_mov_b32 %s, %s" % (sr(sM0), sr(sLdsBase)))
    a("v_cmp_eq_u32 vcc, %s, %s" % (sr(sLast), vr(vPg)))
    a("s_and_b64 vcc, vcc, s[52:53]")
    a("s_ff1_i32_b64 %s, vcc" % sr(sMaskIt))
    a("s_waitcnt vmcnt(%d)" % (8 * D + 4 if spec else 4))
    st()
    a("v_readlane_b32 %s, %s, %s" % (sr(sX), vr(vBT), sr(sX)))
    a("v_mov_b32 %s, %s" % (vr(vT), sr(sX)))
    a("v_cndmask_b32 %s, %s, %s, s[58:59]" % (vr(vBT), vr(vBT), vr(vT)))
    a("v_cmp_gt_i32 vcc, 0, %s" % vr(vBT))
    a("v_add_u32 %s, 4096, %s" % (vr(vT), vr(vBT)))
    a("s_nop 0")
    a("v_cndmask_b32 %s, %s, %s, vcc" % (vr(vBT), vr(vBT), vr(vT)))
    if spec:
        a("v_cmp_ne_u32 vcc, %s, %s" % (vr(vBT), vr(vT2)))
    a("v_lshlrev_b32 %s, 14, %s" % (vr(vBT), vr(vBT)))
    a("v_cndmask_b32 %s, %s, %s, s[52:53]" % (vr(vBT), vr(vAl), vr(vBT)))
    if spec:
        a("s_and_b32 %s, vcc_lo, s52" % sr(sTmp))
        a("s_and_b32 %s, %s, %d" % (sr(sTmp), sr(sTmp), (1 << D) - 1))
        a("s_cbranch_scc0 L_specok")
        a("s_waitcnt vmcnt(0)")
    a.label("L_pro")
    a("v_readlane_b32 %s, %s, %s" % (sr(sOff), vr(vBT), sr(sIt)))
    a("s_mov_b32 m0, %s" % sr(sM0))
    a("s_add_u32 %s, %s, %d" % (sr(sTmp), sr(sM0), KSZ))
    a("s_add_u32 %s, %s, %d" % (sr(sM0), sr(sM0), SLOT))
    a("s_add_u32 %s, %s, 1" % (sr(sIt), sr(sIt)))
    a("s_nop 0")
    dmaK()
    a("s_mov_b32 m0, %s" % sr(sTmp))
    a("s_cmp_lt_u32 %s, %d" % (sr(sIt), D))
    dmaV()
    a("s_cbranch_scc1 L_pro")
    a.label("L_specok")
    a("s_mov_b32 %s, 0" % sr(sIt))
    a("s_mov_b32 %s, 0" % sr(sSlot))
    a("s_mov_b32 %s, %d" % (sr(sKD), D))
    a("s_cmp_gt_i32 %s, 0" % sr(sTmp2))
    a("s_cbranch_scc1 L_qok")
    a("s_waitcnt vmcnt(%d)" % (8 * D))
    for r in range(16):
        a("v_mov_b32 %s, 0" % vr(vQ + r))
    a.label("L_qok")
    a("s_cmp_eq_u32 %s, 0" % sr(sN))
    a("s_cbranch_scc1 L_epi")
    a.raw(".p2align 6")
    a.label("L_loop")
    a("v_add_u32 %s, %s, %s" % (vr(vKa2), sr(sSlot), vr(vKa)))
    a("v_add_u32 %s, %s, %s" % (vr(vVb0), sr(sSlot), vr(vVa0)))
    a("v_add_u32 %s, %s, %s" % (vr(vVb1), sr(sSlot), vr(vVa1)))
    a("v_readlane_b32 %s, %s, %s" % (sr(sOff), vr(vBT), sr(sKD)))
    a("s_add_u32 %s, %s, %s" % (sr(sM0), sr(sLdsBase), sr(sSlot)))
    a("s_mov_b32 m0, %s" % sr(sM0))
    a("s_waitcnt vmcnt(%d)" % (8 * D - 4))
    if exp < 2:
      for j in range(4):
        a("ds_read_b128 %s, %s offset:%d" % (vr(vK + 4 * j, 4), vr(vKa2), 64 * j))
      for j in range(4):
        a("s_waitcnt lgkmcnt(%d)" % (3 - j))
        c = "0" if j == 0 else vr(vS, 4)
        a("v_mfma_f32_16x16x32_bf16 %s, %s, %s, %s" % (vr(vS, 4), vr(vK + 4 * j, 4), vr(vQ + 4 * j, 4), c))
    dmaK()
    a("s_add_u32 %s, %s, %d" % (sr(sM0), sr(sM0), KSZ))
    a("s_waitcnt vmcnt(%d)" % (8 * D - 4))
    if exp < 2:
      for b in range(8):
        a("ds_read_b64_tr_b16 %s, %s offset:%d" % (vr(vVt + 2 * b, 2), vr(vVb0 if b < 4 else vVb1), 32 * (b & 3)))
    a("s_mov_b32 m0, %s" % sr(sM0))
    if exp: a("s_branch L_skipc")
    a("s_cmp_lg_u32 %s, %s" % (sr(sIt), sr(sMaskIt)))
    a("s_cbranch_scc1 L_nomask")
    for r in range(4):
        a("v_add_u32 %s, %d, %s" % (vr(vT), r, vr(vTok)))
        a("v_cmp_gt_u32 vcc, %s, %s" % (sr(sRem), vr(vT)))
        a("s_nop 1")
        a("v_cndmask_b32 %s, %s, %s, vcc" % (vr(vS + r), vr(vNinf), vr(vS + r)))
    a.label("L_nomask")
    a("v_max3_f32 %s, %s, %s, %s" % (vr(vT), vr(vS), vr(vS + 1), vr(vS + 2)))
    a("v_max3_f32 %s, %s, %s, %s" % (vr(vT), vr(vT), vr(vS + 3), vr(vM)))
    a("v_mov_b32 %s, %s" % (vr(vT2), vr(vT)))
    a("s_nop 1")
    a("v_permlane32_swap_b32 %s, %s" % (vr(vT), vr(vT2)))
    a("v_max_f32 %s, %s, %s" % (vr(vT), vr(vT), vr(vT2)))
    a("v_mov_b32 %s, %s" % (vr(vT2), vr(vT)))
    a("s_nop 1")
    a("v_permlane16_swap_b32 %s, %s" % (vr(vT), vr(vT2)))
    a("v_max_f32 %s, %s, %s" % (vr(vMn), vr(vT), vr(vT2)))
    a("v_cmp_gt_f32 vcc, %s, %s" % (vr(vMn), vr(vM)))
    a("v_mul_f32 %s, %s, %s" % (vr(vMcn), sr(sC), vr(vMn)))
    a("s_cbranch_vccz L_noresc")
    a("v_sub_f32 %s, %s, %s" % (vr(vAl), vr(vMc), vr(vMcn)))
    a("v_exp_f32 %s, %s" % (vr(vAl), vr(vAl)))
    a("v_mov_b32 %s, %s" % (vr(vM), vr(vMn)))
    a("v_mov_b32 %s, %s" % (vr(vMc), vr(vMcn)))
    a("v_mul_f32 %s, %s, %s" % (vr(vL), vr(vL), vr(vAl)))
    for r in range(32):
        a("v_mul_f32 %s, %s, %s" % (vr(vAcc + r), vr(vAcc + r), vr(vAl)))
    a.label("L_noresc")
    for r in range(4):
        a("v_fma_f32 %s, %s, %s, -%s" % (vr(vP + r), vr(vS + r), sr(sC), vr(vMc)))
    for r in range(4):
        a("v_exp_f32 %s, %s" % (vr(vP + r), vr(vP + r)))
    a("s_nop 0")
    a("v_cvt_pk_bf16_f32 %s, %s, %s" % (vr(vPk), vr(vP), vr(vP + 1)))
    a("v_cvt_pk_bf16_f32 %s, %s, %s" % (vr(vPk + 1), vr(vP + 2), vr(vP + 3)))
    a("v_add_f32 %s, %s, %s" % (vr(vT), vr(vP), vr(vP + 1)))
    a("v_add_f32 %s, %s, %s" % (vr(vT2), vr(vP + 2), vr(vP + 3)))
    a("s_waitcnt lgkmcnt(0)")
    for b in range(8):
        a("v_mfma_f32_16x16x16_bf16 %s, %s, %s, %s" % (vr(vAcc + 4 * b, 4), vr(vVt + 2 * b, 2), vr(vPk, 2), vr(vAcc + 4 * b, 4)))
    a.label("L_skipc")
    a("s_waitcnt lgkmcnt(0)")
    a("s_add_u32 %s, %s, %d" % (sr(sSlot), sr(sSlot), SLOT))
    dmaV()
    a("v_add_f32 %s, %s, %s" % (vr(vT), vr(vT), vr(vT2)))
    a("v_add_f32 %s, %s, %s" % (vr(vL), vr(vL), vr(vT)))
    a("s_cmp_eq_u32 %s, %d" % (sr(sSlot), D * SLOT))
    a("s_cselect_b32 %s, 0, %s" % (sr(sSlot), sr(sSlot)))
    a("s_add_u32 %s, %s, 1" % (sr(sKD), sr(sKD)))
    a("s_add_u32 %s, %s, 1" % (sr(sIt), sr(sIt)))
    a("s_cmp_lt_u32 %s, %s" % (sr(sIt), sr(sN)))
    a("s_cbranch_scc1 L_loop")
    a.label("L_epi")
    st()
    a("s_lshl_b32 %s, %s, 3" % (sr(sTmp), sr(sHead)))
    a("v_add_u32 %s, %s, %s" % (vr(vSt), sr(sTmp), vr(vI)))
    a("v_mul_u32_u24 %s, %d, %s" % (vr(vMl), G, vr(vSt)))
    a("v_lshlrev_b32 %s, 9, %s" % (vr(vSt), vr(vMl)))
    a("s_lshl_b32 %s, s2, 6" % sr(sTmp))
    a("v_lshl_add_u32 %s, %s, 4, %s" % (vr(vSt), vr(vG), vr(vSt)))
    a("v_add_u32 %s, %s, %s" % (vr(vSt), sr(sTmp), vr(vSt)))
    a("v_cmp_gt_u32 vcc, 8, %s" % vr(vI))
    a("v_bfrev_b32 %s, 2" % vr(vAl))
    a("v_mov_b32 %s, %s" % (vr(vT2), vr(vL)))
    a("v_cndmask_b32 %s, %s, %s, vcc" % (vr(vSt), vr(vAl), vr(vSt)))
    for b in range(8):
        a("s_mov_b32 %s, %d" % (sr(sTmp), b * G * 64))
        if not nostore: a("buffer_store_dwordx4 %s, %s, %s, %s offen %s" % (vr(vAcc + 4 * b, 4), vr(vSt), sr(sSW, 4), sr(sTmp), stflags))
    a("v_permlane32_swap_b32 %s, %s" % (vr(vL), vr(vT2)))
    a("v_add_f32 %s, %s, %s" % (vr(vL), vr(vL), vr(vT2)))
    a("v_mov_b32 %s, %s" % (vr(vT2), vr(vL)))
    a("v_add_u32 %s, s2, %s" % (vr(vMl), vr(vMl)))
    a("v_lshlrev_b32 %s, 3, %s" % (vr(vMl), vr(vMl)))
    a("v_permlane16_swap_b32 %s, %s" % (vr(vL), vr(vT2)))
    a("v_add_f32 %s, %s, %s" % (vr(vE + 1), vr(vL), vr(vT2)))
    a("v_add_u32 %s, 0x%x, %s" % (vr(vMl), 32 * 8 * G * 64, vr(vMl)))
    a("v_cmp_gt_u32 vcc, 8, v0")
    a("v_mov_b32 %s, %s" % (vr(vE), vr(vMc)))
    a("s_nop 0")
    a("v_cndmask_b32 %s, %s, %s, vcc" % (vr(vMl), vr(vAl), vr(vMl)))
    a("buffer_store_dwordx2 %s, %s, %s, 0 offen" % (vr(vE, 2), vr(vMl), sr(sSW, 4)))
    if stamp == 2:
        st()
        a("s_waitcnt vmcnt(0)")
        st()
        a("s_waitcnt lgkmcnt(0)")
        a("s_lshl_b32 s96, s2, 2")
        a("s_add_u32 s96, s96, %s" % sr(sHead))
        a("s_lshl_b32 s96, s96, 6")
        a("v_mov_b32 v90, 0x8000000")
        for i in range(nst[0]):
            a("v_mov_b32 v91, s%d" % (64 + 2 * i))
            a("buffer_store_dword v91, v90, %s, s96 offen offset:%d" % (sr(sSW, 4), 4 * i))
            a("s_nop 1")
    a.label("L_main_end")
    a("s_endpgm")
    nv2 = comb(a, G)
    a.raw('.section .rodata,"a"')
    for nm, nv in (("fd_main_kernel", nvgpr), ("fd_comb_kernel", nv2)):
        a.raw(".p2align 6")
        a.raw(".amdhsa_kernel %s" % nm)
        a.raw("  .amdhsa_next_free_vgpr %d" % nv)
        a.raw("  .amdhsa_next_free_sgpr %d" % (100 if stamp else 64))
        a.raw("  .amdhsa_accum_offset %d" % ((nv + 3) // 4 * 4))
        a.raw("  .amdhsa_group_segment_fixed_size 0")
        a.raw("  .amdhsa_kernarg_size 64")
        a.raw("  .amdhsa_user_sgpr_count 2")
        a.raw("  .amdhsa_user_sgpr_kernarg_segment_ptr 1")
        a.raw("  .amdhsa_system_sgpr_workgroup_id_x 1")
        a.raw(".end_amdhsa_kernel")
    return a.text()

def comb(a, G):
    a.raw(".globl fd_comb_kernel")
    a.raw(".p2align 8")
    a.raw(".type fd_comb_kernel,@function")
    a.label("fd_comb_kernel")
    NS = G // 16
    NA = G // 64
    a("s_cmp_ge_u32 s2, 256")
    a("s_cbranch_scc1 L_comb_end")
    a("s_load_dwordx2 s[4:5], s[0:1], 56")
    a("s_load_dwordx2 s[6:7], s[0:1], 40")
    a("s_mul_i32 s3, s2, %d" % (G * 64))
    a("v_lshlrev_b32 v1, 4, v0")
    a("v_add_u32 v1, s3, v1")
    a("s_lshr_b32 s16, s2, 3")
    a("s_mul_i32 s17, s16, %d" % (G * 8))
    a("s_add_u32 s17, s17, 0x%x" % (32 * 8 * G * 64))
    a("v_lshrrev_b32 v2, 2, v0")
    a("v_lshlrev_b32 v2, 3, v2")
    a("v_add_u32 v2, s17, v2")
    a("v_lshlrev_b32 v3, 3, v0")
    a("v_add_u32 v3, s17, v3")
    a("s_mov_b32 s10, 0x10000000")
    a("s_mov_b32 s11, 0x00020000")
    a("s_mov_b32 s14, 8192")
    a("s_mov_b32 s15, 0x00020000")
    for k in range(1, NS // 4):
        a("s_mov_b32 s%d, %d" % (20 + k, 4096 * k))
    a("s_waitcnt lgkmcnt(0)")
    a("s_mov_b32 s8, s4")
    a("s_and_b32 s9, s5, 0xffff")
    a("s_mov_b32 s12, s6")
    a("s_and_b32 s13, s7, 0xffff")
    vAll = 8
    vOwn = vAll + 2 * NA
    vO = (vOwn + 2 * NS + 3) // 4 * 4
    for k in range(NA):
        a("buffer_load_dwordx2 %s, v3, s[8:11], 0 offen offset:%d" % (vr(vAll + 2 * k, 2), 512 * k))
    for k in range(NS):
        a("buffer_load_dwordx2 %s, v2, s[8:11], 0 offen offset:%d" % (vr(vOwn + 2 * k, 2), 128 * k))
    for k in range(NS):
        so = "0" if k < 4 else "s%d" % (20 + k // 4)
        a("buffer_load_dwordx4 %s, v1, s[8:11], %s offen offset:%d" % (vr(vO + 4 * k, 4), so, 1024 * (k % 4)))
    a("s_waitcnt vmcnt(%d)" % (2 * NS))
    a("v_mov_b32 v4, %s" % vr(vAll))
    for k in range(1, NA):
        a("v_max_f32 v4, v4, %s" % vr(vAll + 2 * k))
    def wave_reduce(reg, tmp, op):
        a("s_nop 1")
        a("%s_dpp %s, %s, %s quad_perm:[1,0,3,2] row_mask:0xf bank_mask:0xf" % (op, vr(reg), vr(reg), vr(reg)))
        a("s_nop 1")
        a("%s_dpp %s, %s, %s quad_perm:[2,3,0,1] row_mask:0xf bank_mask:0xf" % (op, vr(reg), vr(reg), vr(reg)))
        reduce_hi(reg, tmp, op)
    def reduce_hi(reg, tmp, op):
        a("s_nop 1")
        a("%s_dpp %s, %s, %s row_ror:4 row_mask:0xf bank_mask:0xf" % (op, vr(reg), vr(reg), vr(reg)))
        a("s_nop 1")
        a("%s_dpp %s, %s, %s row_ror:8 row_mask:0xf bank_mask:0xf" % (op, vr(reg), vr(reg), vr(reg)))
        a("v_mov_b32 %s, %s" % (vr(tmp), vr(reg)))
        a("s_nop 1")
        a("v_permlane16_swap_b32 %s, %s" % (vr(reg), vr(tmp)))
        a("%s %s, %s, %s" % (op, vr(reg), vr(reg), vr(tmp)))
        a("v_mov_b32 %s, %s" % (vr(tmp), vr(reg)))
        a("s_nop 1")
        a("v_permlane32_swap_b32 %s, %s" % (vr(reg), vr(tmp)))
        a("%s %s, %s, %s" % (op, vr(reg), vr(reg), vr(tmp)))
    wave_reduce(4, 5, "v_max_f32")
    a("v_mov_b32 v6, 0")
    for k in range(NA):
        a("v_sub_f32 v5, %s, v4" % vr(vAll + 2 * k))
        a("v_exp_f32 v5, v5")
        a("s_nop 0")
        a("v_fmac_f32 v6, v5, %s" % vr(vAll + 2 * k + 1))
    wave_reduce(6, 5, "v_add_f32")
    a("s_waitcnt vmcnt(%d)" % NS)
    for k in range(NS):
        a("v_sub_f32 %s, %s, v4" % (vr(vOwn + 2 * k), vr(vOwn + 2 * k)))
    for k in range(NS):
        a("v_exp_f32 %s, %s" % (vr(vOwn + 2 * k), vr(vOwn + 2 * k)))
    a("v_rcp_f32 v6, v6")
    vR = vO + 4 * NS
    for k in range(NS):
        a("s_waitcnt vmcnt(%d)" % (NS - 1 - k))
        for r in range(4):
            if k == 0:
                a("v_mul_f32 %s, %s, %s" % (vr(vR + r), vr(vOwn), vr(vO + r)))
            else:
                a("v_fmac_f32 %s, %s, %s" % (vr(vR + r), vr(vOwn + 2 * k), vr(vO + 4 * k + r)))
    for r in range(4):
        reduce_hi(vR + r, 5, "v_add_f32")
    for r in range(4):
        a("v_mul_f32 %s, %s, v6" % (vr(vR + r), vr(vR + r)))
    a("v_cvt_pk_bf16_f32 %s, %s, %s" % (vr(vR), vr(vR), vr(vR + 1)))
    a("v_cvt_pk_bf16_f32 %s, %s, %s" % (vr(vR + 1), vr(vR + 2), vr(vR + 3)))
    a("s_lshl_b32 s18, s2, 5")
    a("v_lshlrev_b32 v1, 3, v0")
    a("v_add_u32 v1, s18, v1")
    a("v_mov_b32 v2, 0x40000000")
    a("v_cmp_gt_u32 vcc, 4, v0")
    a("s_nop 1")
    a("v_cndmask_b32 v1, v2, v1, vcc")
    a("buffer_store_dwordx2 %s, v1, s[12:15], 0 offen" % vr(vR, 2))
    a.label("L_comb_end")
    a("s_endpgm")
    return vR + 4

if __name__ == "__main__":
    out = sys.argv[1] if len(sys.argv) > 1 else "cdna_kernels/%s.s" % NAME
    kw = {}
    for x in sys.argv[2:]:
        k, v = x.split("=")
        kw[k] = int(v) if v.lstrip('-').isdigit() else v.replace("+", " ")
    open(out, "w").write(gen(**kw))
```

```python
import sys
sys.path.insert(0, "gen")
NAME = "standalone__paged_block_table_kv_radixattention__decode"
HDR = open("cdna_kernels/%s.s.ref" % NAME).read().split("; Override launch geometry")[0]

class Asm:
    def __init__(self):
        self.lines = []
    def __call__(self, s):
        self.lines.append("    " + s)
    def label(self, s):
        self.lines.append(s + ":")
    def raw(self, s):
        self.lines.append(s)
    def text(self):
        return "\n".join(self.lines) + "\n"

def vr(a, n=1):
    return "v%d" % a if n == 1 else "v[%d:%d]" % (a, a + n - 1)
def sr(a, n=1):
    return "s%d" % a if n == 1 else "s[%d:%d]" % (a, a + n - 1)

KP, VP = 1088, 1056
KSZ, VSZ = 4 * KP, 4 * VP
SLOT = KSZ + VSZ

def gen(G=256, D=4, nt=1, stamp=0, exp=0, nostore=0, nobt=0, stflags='', spec=1, bal=1, qfirst=1, X=2, LEAD=2, NSH=16, slp=1, st2=0):
    NTF = " nt" if nt else ""
    a = Asm()
    a.raw(HDR.rstrip())
    QB = 4 * D * SLOT
    CB = 0x800000
    a.raw("; @launch kernel=fd_main_kernel grid=(%d,1,1) block=(320,1,1) lds=%d" % (G, QB + 512))
    a.raw("; @launch kernel=fd_comb_kernel grid=(256,1,1) block=(64,1,1) lds=0")
    a.raw('.amdgcn_target "amdgcn-amd-amdhsa--gfx950"')
    a.raw(".text")
    a.raw(".globl fd_main_kernel")
    a.raw(".p2align 8")
    a.raw(".type fd_main_kernel,@function")
    a.label("fd_main_kernel")
    vI, vG = 1, 2
    vBT, vPg = 3, 4
    vKs = 8
    vVs = 12
    vKa, vVa0, vVa1 = 16, 17, 18
    vKa2, vVb0, vVb1 = 19, 20, 21
    vTok, vNinf, vSt, vMl = 22, 23, 24, 25
    vM, vMc, vL, vT, vT2, vMn, vMcn, vAl = 26, 27, 28, 29, 30, 31, 32, 33
    vP = 36
    vPk = 40
    vE = 42
    vS = 44
    vQ = 48
    vAcc = 64
    vK = 96
    vVt = 112
    nvgpr = 128
    sQ, sK, sV, sBT = 64, 66, 68, 70
    sCtxP, sWsP = 72, 78
    sSK, sSV, sSQ, sSW, sSB = 16, 20, 24, 28, 32
    sHead, sCtx, sNp, sLast, sRem, sN, sMaskIt = 36, 37, 38, 39, 40, 41, 42
    sC, sTmp, sTmp2, sIt, sSlot, sOff, sLdsBase, sKD, sM0 = 43, 44, 45, 46, 47, 48, 49, 50, 51
    sS, sF, sLim, sVer = 54, 56, 57, 60
    vBTr, vPrA, vQA = 5, 6, 7
    nst = [0]
    def st():
        if stamp == 2:
            a("s_memrealtime s[%d:%d]" % (80 + 2 * nst[0], 81 + 2 * nst[0])); nst[0] += 1
    a("s_cmp_ge_u32 s2, %d" % G)
    a("s_cbranch_scc1 L_main_end")
    st()
    a("s_load_dwordx16 s[64:79], s[0:1], 0")
    a("v_lshrrev_b32 v1, 6, v0")
    a("v_bfe_u32 %s, v0, 4, 2" % vr(vG))
    a("v_readfirstlane_b32 %s, v1" % sr(sHead))
    a("v_and_b32 %s, 15, v0" % vr(vI))
    a("v_and_b32 v0, 63, v0")
    a("s_cmp_eq_u32 %s, 4" % sr(sHead))
    a("s_cbranch_scc1 L_sched")
    a("s_lshl_b32 %s, %s, 8" % (sr(sTmp), sr(sHead)))
    a("s_mul_i32 %s, %s, %d" % (sr(sLdsBase), sr(sHead), D * SLOT))
    a("v_xor_b32 %s, %s, %s" % (vr(vT), vr(vI), vr(vG)))
    a("v_lshl_add_u32 %s, %s, 4, %s" % (vr(vT), vr(vT), sr(sTmp)))
    a("v_lshl_add_u32 %s, %s, 10, %s" % (vr(vKs), vr(vG), vr(vT)))
    for n in range(1, 4):
        a("v_add_u32 %s, %d, %s" % (vr(vKs + n), (4096 - KP) * n, vr(vKs)))
    a("s_mov_b32 %s, 0x4000000" % sr(sSK + 2))
    a("s_mov_b32 %s, 0x00020000" % sr(sSK + 3))
    a("s_lshl_b32 %s, s2, 14" % sr(sOff))
    a("s_mov_b32 m0, %s" % sr(sLdsBase))
    a("s_lshl_b32 %s, %s, 11" % (sr(sTmp2), sr(sHead)))
    a("v_lshl_add_u32 %s, %s, 8, %s" % (vr(vSt), vr(vI), sr(sTmp2)))
    a("v_lshl_add_u32 %s, %s, 4, %s" % (vr(vSt), vr(vG), vr(vSt)))
    a("v_and_b32 %s, 8, %s" % (vr(vT), vr(vI)))
    a("v_lshl_add_u32 %s, %s, 27, %s" % (vr(vSt), vr(vT), vr(vSt)))
    a("s_mov_b32 %s, 8192" % sr(sSQ + 2))
    a("s_mov_b32 %s, %s" % (sr(sSQ + 3), sr(sSK + 3)))
    a("s_add_u32 %s, %s, 128" % (sr(sTmp), sr(sTmp)))
    a("v_lshrrev_b32 %s, 1, v0" % vr(vT))
    a("v_and_b32 %s, 8, %s" % (vr(vT), vr(vT)))
    a("v_xor_b32 %s, %s, %s" % (vr(vT), vr(vI), vr(vT)))
    a("v_lshl_add_u32 %s, %s, 4, %s" % (vr(vT), vr(vT), sr(sTmp)))
    a("v_lshl_add_u32 %s, %s, 12, %s" % (vr(vVs), vr(vG), vr(vT)))
    for n in range(1, 4):
        a("v_subrev_u32 %s, %d, %s" % (vr(vVs + n), (VP - 1024), vr(vVs + n - 1)))
    a("s_mov_b32 %s, 0x4000080" % sr(sSV + 2))
    a("s_mov_b32 %s, %s" % (sr(sSV + 3), sr(sSK + 3)))
    a("s_add_u32 %s, %s, %d" % (sr(sM0), sr(sLdsBase), KSZ))
    def dmaK():
        for n in range(4):
            a("buffer_load_dwordx4 %s, %s, %s offen offset:%d%s lds" % (vr(vKs + n), sr(sSK, 4), sr(sOff), KP * n, NTF))
    def dmaV():
        for n in range(4):
            a("buffer_load_dwordx4 %s, %s, %s offen offset:%d%s lds" % (vr(vVs + n), sr(sSV, 4), sr(sOff), VP * n, NTF))
    if stamp == 2 and st2: st()
    a("s_waitcnt lgkmcnt(0)")
    if stamp == 2 and st2: st()
    a("s_mov_b32 %s, %s" % (sr(sSK), sr(sK)))
    a("s_and_b32 %s, %s, 0xffff" % (sr(sSK + 1), sr(sK + 1)))
    dmaK()
    a("s_load_dword %s, %s, 0" % (sr(sCtx), sr(sCtxP, 2)))
    a("s_mov_b32 %s, %s" % (sr(sSQ), sr(sQ)))
    a("s_and_b32 %s, %s, 0xffff" % (sr(sSQ + 1), sr(sQ + 1)))
    a("s_mov_b32 m0, %s" % sr(sM0))
    for j in range(4):
        a("buffer_load_dwordx4 %s, %s, %s, 0 offen offset:%d" % (vr(vQ + 4 * j, 4), vr(vSt), sr(sSQ, 4), 64 * j))
    a("s_sub_u32 %s, %s, 128" % (sr(sSV), sr(sV)))
    a("s_subb_u32 %s, %s, 0" % (sr(sSV + 1), sr(sV + 1)))
    a("s_and_b32 %s, %s, 0xffff" % (sr(sSV + 1), sr(sSV + 1)))
    a("s_add_u32 %s, %s, %d" % (sr(sM0), sr(sM0), VSZ))
    for k in range(D):
        if k:
            dmaK()
            a("s_mov_b32 m0, %s" % sr(sM0))
            a("s_add_u32 %s, %s, %d" % (sr(sM0), sr(sM0), VSZ))
            a("s_nop 0")
        dmaV()
        if k < D - 1:
            a("s_mov_b32 m0, %s" % sr(sM0))
            a("s_add_u32 %s, %s, %d" % (sr(sM0), sr(sM0), KSZ))
            a("s_add_u32 %s, %s, %d" % (sr(sOff), sr(sOff), G << 14))
    a("v_lshl_add_u32 %s, v0, 8, s2" % vr(vPg))
    a("s_mov_b32 %s, %s" % (sr(sSB), sr(sBT)))
    a("s_and_b32 %s, %s, 0xffff" % (sr(sSB + 1), sr(sBT + 1)))
    a("v_lshlrev_b32 %s, 2, %s" % (vr(vBTr), vr(vPg)))
    a("s_mov_b32 %s, 16384" % sr(sSB + 2))
    a("s_mov_b32 %s, %s" % (sr(sSB + 3), sr(sSK + 3)))
    a("buffer_load_dword %s, %s, %s, 0 offen" % (vr(vBTr), vr(vBTr), sr(sSB, 4)))
    a("s_mov_b32 %s, %s" % (sr(sSW), sr(sWsP)))
    a("s_and_b32 %s, %s, 0xffff" % (sr(sSW + 1), sr(sWsP + 1)))
    a("s_mov_b32 %s, 0x10000000" % sr(sSW + 2))
    a("s_mov_b32 %s, %s" % (sr(sSW + 3), sr(sSK + 3)))
    a("s_lshl_b32 %s, %s, 2" % (sr(sTmp), sr(sHead)))
    a("s_add_u32 %s, %s, %d" % (sr(sTmp), sr(sTmp), QB + 256))
    a("v_mov_b32 %s, %s" % (vr(vPrA), sr(sTmp)))
    a("v_lshrrev_b32 %s, 2, %s" % (vr(vT), vr(vI)))
    a("v_mul_u32_u24 %s, %d, %s" % (vr(vKa), KP, vr(vT)))
    a("v_and_b32 %s, 3, %s" % (vr(vT), vr(vI)))
    a("v_lshl_add_u32 %s, %s, 8, %s" % (vr(vKa), vr(vT), vr(vKa)))
    a("v_xor_b32 %s, %s, %s" % (vr(vT), vr(vT), vr(vG)))
    a("v_lshl_add_u32 %s, %s, 4, %s" % (vr(vKa), vr(vT), vr(vKa)))
    a("v_add_u32 %s, %s, %s" % (vr(vKa), sr(sLdsBase), vr(vKa)))
    a("v_lshrrev_b32 %s, 2, %s" % (vr(vT), vr(vI)))
    a("v_mul_u32_u24 %s, %d, %s" % (vr(vVa0), VP, vr(vT)))
    a("v_lshl_add_u32 %s, %s, 8, %s" % (vr(vVa0), vr(vG), vr(vVa0)))
    a("v_and_b32 %s, 3, %s" % (vr(vT), vr(vI)))
    a("v_lshl_add_u32 %s, %s, 3, %s" % (vr(vVa0), vr(vT), vr(vVa0)))
    a("v_add_u32 %s, %s, %s" % (vr(vVa0), sr(sLdsBase), vr(vVa0)))
    a("v_add_u32 %s, %d, %s" % (vr(vVa0), KSZ, vr(vVa0)))
    a("v_and_b32 %s, 1, %s" % (vr(vT), vr(vG)))
    a("v_xor_b32 %s, 1, %s" % (vr(vT2), vr(vT)))
    a("v_lshl_add_u32 %s, %s, 7, %s" % (vr(vVa1), vr(vT2), vr(vVa0)))
    a("v_lshl_add_u32 %s, %s, 7, %s" % (vr(vVa0), vr(vT), vr(vVa0)))
    a("v_lshlrev_b32 %s, 2, %s" % (vr(vTok), vr(vG)))
    a("s_mov_b32 %s, 0x3e0293ee" % sr(sC))
    for r in range(32):
        a("v_mov_b32 %s, 0" % vr(vAcc + r))
    a("v_mov_b32 %s, 0xff800000" % vr(vNinf))
    a("v_mov_b32 %s, 0xff800000" % vr(vM))
    a("v_mov_b32 %s, 0xff800000" % vr(vMc))
    a("v_mov_b32 %s, 0" % vr(vL))
    a("v_bfrev_b32 %s, 1" % vr(vAl))
    a("s_waitcnt lgkmcnt(0)")
    st()
    a("s_mov_b32 %s, %s" % (sr(sTmp2), sr(sCtx)))
    a("s_cmp_lt_i32 %s, 1" % sr(sCtx))
    a("s_cselect_b32 %s, 0x10000, %s" % (sr(sCtx), sr(sCtx)))
    a("s_min_u32 %s, %s, 0x10000" % (sr(sCtx), sr(sCtx)))
    a("s_add_u32 %s, %s, 15" % (sr(sNp), sr(sCtx)))
    a("s_lshr_b32 %s, %s, 4" % (sr(sNp), sr(sNp)))
    a("s_lshr_b32 %s, %s, 8" % (sr(sF), sr(sNp)))
    a("s_sub_u32 %s, %s, 1" % (sr(sLast), sr(sNp)))
    a("s_lshl_b32 %s, %s, 4" % (sr(sRem), sr(sLast)))
    a("s_sub_u32 %s, %s, %s" % (sr(sRem), sr(sCtx), sr(sRem)))
    a("s_sub_u32 %s, %s, %d" % (sr(sS), sr(sF), X))
    a("s_lshl_b32 %s, %s, 8" % (sr(sLim), sr(sS)))
    a("s_cmp_ge_u32 %s, %d" % (sr(sF), X + 8))
    a("s_cselect_b32 %s, %s, %s" % (sr(sLim), sr(sLim), sr(sNp)))
    a("s_cselect_b32 %s, %s, 64" % (sr(sS), sr(sS)))
    a("s_cselect_b32 %s, 0x40000000, 0" % (sr(sTmp)))
    a("v_cmp_gt_u32 s[52:53], %s, %s" % (sr(sLim), vr(vPg)))
    a("v_cmp_eq_u32 vcc, %s, %s" % (sr(sLast), vr(vPg)))
    a("s_bcnt1_i32_b64 %s, s[52:53]" % sr(sN))
    a("s_or_b32 %s, %s, %s" % (sr(sN), sr(sN), sr(sTmp)))
    a("s_mov_b32 %s, 0" % sr(sIt))
    a("s_mov_b32 %s, %d" % (sr(sVer), D))
    a("s_and_b64 vcc, vcc, s[52:53]")
    a("s_ff1_i32_b64 %s, vcc" % sr(sMaskIt))
    a("v_lshlrev_b32 %s, 14, %s" % (vr(vBT), vr(vPg)))
    a("v_cndmask_b32 %s, %s, %s, s[52:53]" % (vr(vBT), vr(vAl), vr(vBT)))
    a("s_lshl_b32 %s, %s, 2" % (sr(sTmp), sr(sS)))
    a("s_sub_u32 %s, %d, %s" % (sr(sTmp), QB, sr(sTmp)))
    a("v_mov_b32 %s, %s" % (vr(vQA), sr(sTmp)))
    a("s_mov_b32 %s, 0" % sr(sSlot))
    a("s_mov_b32 %s, %d" % (sr(sKD), D))
    a("s_cmp_gt_i32 %s, 0" % sr(sTmp2))
    a("s_cbranch_scc1 L_qok")
    a("s_waitcnt vmcnt(%d)" % (8 * D - 4))
    for r in range(16):
        a("v_mov_b32 %s, 0" % vr(vQ + r))
    a.label("L_qok")
    a("s_cmp_eq_u32 %s, 0" % sr(sN))
    a("s_cbranch_scc1 L_epi")
    a.raw(".p2align 6")
    a.label("L_loop")
    a("s_cmp_eq_u32 %s, %s" % (sr(sIt), sr(sVer)))
    a("s_cbranch_scc1 L_verify")
    a("v_add_u32 %s, %s, %s" % (vr(vKa2), sr(sSlot), vr(vKa)))
    a("v_add_u32 %s, %s, %s" % (vr(vVb0), sr(sSlot), vr(vVa0)))
    a("v_add_u32 %s, %s, %s" % (vr(vVb1), sr(sSlot), vr(vVa1)))
    a("v_readlane_b32 %s, %s, %s" % (sr(sOff), vr(vBT), sr(sKD)))
    a("v_mov_b32 %s, %s" % (vr(vT), sr(sIt)))
    a("s_add_u32 %s, %s, %s" % (sr(sM0), sr(sLdsBase), sr(sSlot)))
    a("s_mov_b64 exec, 1")
    a("ds_write_b32 %s, %s" % (vr(vPrA), vr(vT)))
    a("s_mov_b64 exec, -1")
    a("s_mov_b32 m0, %s" % sr(sM0))
    a("s_cmp_ge_u32 %s, %s" % (sr(sKD), sr(sS)))
    a("s_cbranch_scc1 L_dyn")
    a.label("L_dynret")
    a("s_waitcnt vmcnt(%d)" % (8 * D - 4))
    if stamp == 2:
        a("s_cmp_lg_u32 %s, 0" % sr(sIt))
        a("s_cbranch_scc1 L_nost")
        st()
        a("s_waitcnt lgkmcnt(0)")
        a.label("L_nost")
        a("s_cmp_lg_u32 %s, %d" % (sr(sIt), D))
        a("s_cbranch_scc1 L_nost2")
        st()
        a("s_waitcnt lgkmcnt(0)")
        a.label("L_nost2")
    if exp < 2:
      for j in range(4):
        a("ds_read_b128 %s, %s offset:%d" % (vr(vK + 4 * j, 4), vr(vKa2), 64 * j))
      for j in range(4):
        a("s_waitcnt lgkmcnt(%d)" % (3 - j))
        c = "0" if j == 0 else vr(vS, 4)
        a("v_mfma_f32_16x16x32_bf16 %s, %s, %s, %s" % (vr(vS, 4), vr(vK + 4 * j, 4), vr(vQ + 4 * j, 4), c))
    dmaK()
    a("s_add_u32 %s, %s, %d" % (sr(sM0), sr(sM0), KSZ))
    a("s_waitcnt vmcnt(%d)" % (8 * D - 4))
    if exp < 2:
      for b in range(8):
        a("ds_read_b64_tr_b16 %s, %s offset:%d" % (vr(vVt + 2 * b, 2), vr(vVb0 if b < 4 else vVb1), 32 * (b & 3)))
    a("s_mov_b32 m0, %s" % sr(sM0))
    if exp: a("s_branch L_skipc")
    a("s_cmp_lg_u32 %s, %s" % (sr(sIt), sr(sMaskIt)))
    a("s_cbranch_scc1 L_nomask")
    for r in range(4):
        a("v_add_u32 %s, %d, %s" % (vr(vT), r, vr(vTok)))
        a("v_cmp_gt_u32 vcc, %s, %s" % (sr(sRem), vr(vT)))
        a("s_nop 1")
        a("v_cndmask_b32 %s, %s, %s, vcc" % (vr(vS + r), vr(vNinf), vr(vS + r)))
    a.label("L_nomask")
    a("v_max3_f32 %s, %s, %s, %s" % (vr(vT), vr(vS), vr(vS + 1), vr(vS + 2)))
    a("v_max3_f32 %s, %s, %s, %s" % (vr(vT), vr(vT), vr(vS + 3), vr(vM)))
    a("v_mov_b32 %s, %s" % (vr(vT2), vr(vT)))
    a("s_nop 1")
    a("v_permlane32_swap_b32 %s, %s" % (vr(vT), vr(vT2)))
    a("v_max_f32 %s, %s, %s" % (vr(vT), vr(vT), vr(vT2)))
    a("v_mov_b32 %s, %s" % (vr(vT2), vr(vT)))
    a("s_nop 1")
    a("v_permlane16_swap_b32 %s, %s" % (vr(vT), vr(vT2)))
    a("v_max_f32 %s, %s, %s" % (vr(vMn), vr(vT), vr(vT2)))
    a("v_cmp_gt_f32 vcc, %s, %s" % (vr(vMn), vr(vM)))
    a("v_mul_f32 %s, %s, %s" % (vr(vMcn), sr(sC), vr(vMn)))
    a("s_cbranch_vccz L_noresc")
    a("v_sub_f32 %s, %s, %s" % (vr(vAl), vr(vMc), vr(vMcn)))
    a("v_exp_f32 %s, %s" % (vr(vAl), vr(vAl)))
    a("v_mov_b32 %s, %s" % (vr(vM), vr(vMn)))
    a("v_mov_b32 %s, %s" % (vr(vMc), vr(vMcn)))
    a("v_mul_f32 %s, %s, %s" % (vr(vL), vr(vL), vr(vAl)))
    for r in range(32):
        a("v_mul_f32 %s, %s, %s" % (vr(vAcc + r), vr(vAcc + r), vr(vAl)))
    a.label("L_noresc")
    for r in range(4):
        a("v_fma_f32 %s, %s, %s, -%s" % (vr(vP + r), vr(vS + r), sr(sC), vr(vMc)))
    for r in range(4):
        a("v_exp_f32 %s, %s" % (vr(vP + r), vr(vP + r)))
    a("s_nop 0")
    a("v_cvt_pk_bf16_f32 %s, %s, %s" % (vr(vPk), vr(vP), vr(vP + 1)))
    a("v_cvt_pk_bf16_f32 %s, %s, %s" % (vr(vPk + 1), vr(vP + 2), vr(vP + 3)))
    a("v_add_f32 %s, %s, %s" % (vr(vT), vr(vP), vr(vP + 1)))
    a("v_add_f32 %s, %s, %s" % (vr(vT2), vr(vP + 2), vr(vP + 3)))
    a("s_waitcnt lgkmcnt(0)")
    for b in range(8):
        a("v_mfma_f32_16x16x16_bf16 %s, %s, %s, %s" % (vr(vAcc + 4 * b, 4), vr(vVt + 2 * b, 2), vr(vPk, 2), vr(vAcc + 4 * b, 4)))
    a.label("L_skipc")
    a("s_waitcnt lgkmcnt(0)")
    a("s_add_u32 %s, %s, %d" % (sr(sSlot), sr(sSlot), SLOT))
    dmaV()
    a("v_add_f32 %s, %s, %s" % (vr(vT), vr(vT), vr(vT2)))
    a("v_add_f32 %s, %s, %s" % (vr(vL), vr(vL), vr(vT)))
    a("s_cmp_eq_u32 %s, %d" % (sr(sSlot), D * SLOT))
    a("s_cselect_b32 %s, 0, %s" % (sr(sSlot), sr(sSlot)))
    a("s_add_u32 %s, %s, 1" % (sr(sKD), sr(sKD)))
    a("s_add_u32 %s, %s, 1" % (sr(sIt), sr(sIt)))
    a("s_cmp_lt_u32 %s, %s" % (sr(sIt), sr(sN)))
    a("s_cbranch_scc1 L_loop")
    a.label("L_epi")
    a("s_cmp_lg_u32 %s, -1" % sr(sVer))
    a("s_cbranch_scc1 L_verify_wait")
    st()
    vPk16 = vK
    a("v_mov_b32 %s, %s" % (vr(vT2), vr(vL)))
    a("s_lshl_b32 %s, %s, 19" % (sr(sTmp), sr(sHead)))
    a("s_lshl_b32 %s, s2, 10" % sr(sTmp2))
    a("v_permlane32_swap_b32 %s, %s" % (vr(vL), vr(vT2)))
    a("s_add_u32 %s, %s, %s" % (sr(sTmp), sr(sTmp), sr(sTmp2)))
    a("v_add_f32 %s, %s, %s" % (vr(vL), vr(vL), vr(vT2)))
    a("v_lshl_add_u32 %s, v0, 4, %s" % (vr(vSt), sr(sTmp)))
    a("v_mov_b32 %s, %s" % (vr(vT2), vr(vL)))
    a("s_mov_b32 %s, 0x40000" % sr(sTmp))
    for k in (0, 1, 4, 5):
        a("v_cvt_pk_bf16_f32 %s, %s, %s" % (vr(vPk16 + 2 * k), vr(vAcc + 4 * k), vr(vAcc + 4 * k + 1)))
        a("v_cvt_pk_bf16_f32 %s, %s, %s" % (vr(vPk16 + 2 * k + 1), vr(vAcc + 4 * k + 2), vr(vAcc + 4 * k + 3)))
    for k in (2, 3, 6, 7):
        a("v_cvt_pk_bf16_f32 %s, %s, %s" % (vr(vPk16 + 2 * k), vr(vAcc + 4 * k), vr(vAcc + 4 * k + 1)))
        a("v_cvt_pk_bf16_f32 %s, %s, %s" % (vr(vPk16 + 2 * k + 1), vr(vAcc + 4 * k + 2), vr(vAcc + 4 * k + 3)))
        if k == 2:
            for r in range(4):
                a("v_mov_b32_dpp %s, %s row_shr:8 row_mask:0xf bank_mask:0xc" % (vr(vPk16 + r), vr(vPk16 + 8 + r)))
        if k == 3:
            if not nostore: a("buffer_store_dwordx4 %s, %s, %s, 0 offen %s" % (vr(vPk16, 4), vr(vSt), sr(sSW, 4), stflags))
    a("v_permlane16_swap_b32 %s, %s" % (vr(vL), vr(vT2)))
    a("s_lshl_b32 %s, %s, 11" % (sr(sTmp2), sr(sHead)))
    for r in range(4, 8):
        a("v_mov_b32_dpp %s, %s row_shr:8 row_mask:0xf bank_mask:0xc" % (vr(vPk16 + r), vr(vPk16 + 8 + r)))
    a("s_add_u32 %s, %s, s2" % (sr(sTmp2), sr(sTmp2)))
    if not nostore: a("buffer_store_dwordx4 %s, %s, %s, %s offen %s" % (vr(vPk16 + 4, 4), vr(vSt), sr(sSW, 4), sr(sTmp), stflags))
    a("v_add_f32 %s, %s, %s" % (vr(vE + 1), vr(vL), vr(vT2)))
    a("v_lshl_add_u32 %s, v0, 8, %s" % (vr(vMl), sr(sTmp2)))
    a("v_mov_b32 %s, %s" % (vr(vE), vr(vMc)))
    a("v_lshlrev_b32 %s, 3, %s" % (vr(vMl), vr(vMl)))
    a("s_mov_b32 %s, 0x200000" % sr(sTmp))
    a("s_mov_b64 exec, 0xff")
    a("buffer_store_dwordx2 %s, %s, %s, %s offen" % (vr(vE, 2), vr(vMl), sr(sSW, 4), sr(sTmp)))
    a("s_mov_b64 exec, -1")
    if stamp == 2:
        st()
        a("s_waitcnt vmcnt(0)")
        st()
        a("s_waitcnt lgkmcnt(0)")
        a("s_lshl_b32 s3, s2, 2")
        a("s_add_u32 s3, s3, %s" % sr(sHead))
        a("s_lshl_b32 s3, s3, 6")
        a("v_mov_b32 v90, 0x8000000")
        for i in range(nst[0]):
            a("v_mov_b32 v91, s%d" % (80 + 2 * i))
            a("buffer_store_dword v91, v90, %s, s3 offen offset:%d" % (sr(sSW, 4), 4 * i))
            a("s_nop 1")
    a.label("L_main_end")
    a("s_endpgm")
    a.label("L_dyn")
    a("s_brev_b32 %s, 1" % sr(sOff))
    a("s_cmp_ge_u32 %s, %s" % (sr(sKD), sr(sN)))
    a("s_cbranch_scc1 L_dynret")
    a("v_lshl_add_u32 %s, %s, 2, %s" % (vr(vT2), sr(sKD), vr(vQA)))
    a.label("L_poll")
    a("ds_read_b32 %s, %s" % (vr(vT), vr(vT2)))
    a("s_waitcnt lgkmcnt(0)")
    a("v_readfirstlane_b32 %s, %s" % (sr(sOff), vr(vT)))
    a("s_cmp_lg_u32 %s, -1" % sr(sOff))
    a("s_cbranch_scc1 L_got")
    a("s_sleep 1")
    a("s_branch L_poll")
    a.label("L_got")
    a("s_cmp_lt_i32 %s, 0" % sr(sOff))
    a("s_cselect_b32 %s, %s, %s" % (sr(sN), sr(sKD), sr(sN)))
    a("s_bitcmp1_b32 %s, 0" % sr(sOff))
    a("s_cselect_b32 %s, %s, %s" % (sr(sMaskIt), sr(sKD), sr(sMaskIt)))
    a("s_andn2_b32 %s, %s, 1" % (sr(sOff), sr(sOff)))
    a("s_branch L_dynret")
    sched(a, D, X, LEAD, NSH, QB, CB, slp)
    a.label("L_verify_wait")
    a("s_waitcnt vmcnt(0)")
    a.label("L_verify")
    a("v_bfrev_b32 %s, 1" % vr(vT2))
    a("s_mov_b32 %s, -1" % sr(sVer))
    a("s_barrier")
    a("v_cmp_gt_i32 vcc, 0, %s" % vr(vBTr))
    a("v_add_u32 %s, 4096, %s" % (vr(vT), vr(vBTr)))
    a("s_nop 0")
    a("v_cndmask_b32 %s, %s, %s, vcc" % (vr(vBTr), vr(vBTr), vr(vT)))
    a("v_lshlrev_b32 %s, 14, %s" % (vr(vBTr), vr(vBTr)))
    a("v_cndmask_b32 %s, %s, %s, s[52:53]" % (vr(vBTr), vr(vT2), vr(vBTr)))
    a("v_cmp_ne_u32 vcc, %s, %s" % (vr(vBTr), vr(vBT)))
    a("s_cbranch_vccnz L_restart")
    a("s_cmp_lt_u32 %s, %s" % (sr(sIt), sr(sN)))
    a("s_cbranch_scc1 L_loop")
    a("s_branch L_epi")
    a.label("L_restart")
    a("s_waitcnt vmcnt(0) lgkmcnt(0)")
    a("s_nop 7")
    a("s_nop 7")
    a("v_mov_b32 %s, %s" % (vr(vBT), vr(vBTr)))
    for r in range(32):
        a("v_mov_b32 %s, 0" % vr(vAcc + r))
    a("v_mov_b32 %s, 0xff800000" % vr(vM))
    a("v_mov_b32 %s, 0xff800000" % vr(vMc))
    a("v_mov_b32 %s, 0" % vr(vL))
    a("s_cmp_gt_i32 %s, 0" % sr(sTmp2))
    a("s_cbranch_scc1 L_qok2")
    for r in range(16):
        a("v_mov_b32 %s, 0" % vr(vQ + r))
    a.label("L_qok2")
    a("s_mov_b32 %s, 0" % sr(sIt))
    a("s_mov_b32 %s, %s" % (sr(sM0), sr(sLdsBase)))
    a.label("L_pro")
    a("v_readlane_b32 %s, %s, %s" % (sr(sOff), vr(vBT), sr(sIt)))
    a("s_mov_b32 m0, %s" % sr(sM0))
    a("s_add_u32 %s, %s, %d" % (sr(sTmp), sr(sM0), KSZ))
    a("s_add_u32 %s, %s, %d" % (sr(sM0), sr(sM0), SLOT))
    a("s_add_u32 %s, %s, 1" % (sr(sIt), sr(sIt)))
    a("s_nop 0")
    dmaK()
    a("s_mov_b32 m0, %s" % sr(sTmp))
    a("s_cmp_lt_u32 %s, %d" % (sr(sIt), D))
    dmaV()
    a("s_cbranch_scc1 L_pro")
    a("s_mov_b32 %s, 0" % sr(sIt))
    a("s_mov_b32 %s, 0" % sr(sSlot))
    a("s_mov_b32 %s, %d" % (sr(sKD), D))
    a("s_branch L_qok")
    nv2 = comb(a, G)
    a.raw('.section .rodata,"a"')
    for nm, nv in (("fd_main_kernel", nvgpr), ("fd_comb_kernel", nv2)):
        a.raw(".p2align 6")
        a.raw(".amdhsa_kernel %s" % nm)
        a.raw("  .amdhsa_next_free_vgpr %d" % nv)
        a.raw("  .amdhsa_next_free_sgpr %d" % (102 if stamp else 80))
        a.raw("  .amdhsa_accum_offset %d" % ((nv + 3) // 4 * 4))
        a.raw("  .amdhsa_group_segment_fixed_size 0")
        a.raw("  .amdhsa_kernarg_size 64")
        a.raw("  .amdhsa_user_sgpr_count 2")
        a.raw("  .amdhsa_user_sgpr_kernarg_segment_ptr 1")
        a.raw("  .amdhsa_system_sgpr_workgroup_id_x 1")
        a.raw(".end_amdhsa_kernel")
    return a.text()

def sched(a, D, X, LEAD, NSH, QB, CB, slp):
    a.label("L_sched")
    a("v_lshlrev_b32 v1, 2, v0")
    a("v_add_u32 v1, %d, v1" % QB)
    a("v_mov_b32 v2, -1")
    a("v_mov_b32 v3, 0")
    a("ds_write_b32 v1, v2")
    a("ds_write_b32 v1, v3 offset:256")
    a("s_lshr_b32 s3, s2, 3")
    a("s_and_b32 s3, s3, %d" % (NSH - 1))
    a("s_and_b32 s18, s3, 3")
    a("s_lshl_b32 s19, s18, 6")
    a("s_mov_b32 s22, 16384")
    a("s_mov_b32 s23, 0x00020000")
    a("s_mov_b32 s26, 256")
    a("s_mov_b32 s27, 0x00020000")
    a("s_mov_b32 s30, 0x10000000")
    a("s_mov_b32 s31, 0x00020000")
    a("s_waitcnt lgkmcnt(0)")
    a("s_load_dword s37, s[72:73], 0")
    a("s_mov_b32 s20, s70")
    a("s_and_b32 s21, s71, 0xffff")
    a("s_mov_b32 s24, s76")
    a("s_and_b32 s25, s77, 0xffff")
    a("s_mov_b32 s28, s78")
    a("s_and_b32 s29, s79, 0xffff")
    a("v_mov_b32 v4, s19")
    a("v_mov_b32 v5, 1")
    a("s_waitcnt lgkmcnt(0)")
    a("s_cmp_lt_i32 s37, 1")
    a("s_cselect_b32 s37, 0x10000, s37")
    a("s_min_u32 s37, s37, 0x10000")
    a("s_add_u32 s38, s37, 15")
    a("s_lshr_b32 s38, s38, 4")
    a("s_lshr_b32 s39, s38, 8")
    a("s_cmp_ge_u32 s39, %d" % (X + 8))
    a("s_cbranch_scc1 L_sdyn")
    a("s_barrier")
    a("s_endpgm")
    a.label("L_sdyn")
    a("s_mov_b64 exec, 1")
    a("buffer_atomic_add v5, v4, s[24:27], 0 offen sc0 sc1")
    a("s_mov_b64 exec, -1")
    a("s_sub_u32 s40, s39, %d" % X)
    a("s_lshl_b32 s41, s40, 8")
    a("s_add_u32 s41, s41, s3")
    a("v_mul_u32_u24 v6, %d, v0" % NSH)
    a("v_add_u32 v6, s41, v6")
    a("v_lshlrev_b32 v7, 2, v6")
    a("buffer_load_dword v7, v7, s[20:23], 0 offen")
    a("s_sub_u32 s42, s38, 1")
    a("v_cmp_gt_u32 s[44:45], s38, v6")
    a("v_cmp_eq_u32 s[46:47], s42, v6")
    a("v_lshlrev_b32 v8, 10, v0")
    a("s_lshl_b32 s43, s18, 8")
    a("s_add_u32 s43, s43, 0x%x" % CB)
    a("v_add_u32 v8, s43, v8")
    a("v_mov_b32 v9, 0")
    a("s_waitcnt vmcnt(1)")
    a("v_readfirstlane_b32 s48, v5")
    a("s_cmp_lg_u32 s48, 0")
    a("s_cbranch_scc1 L_snoinit")
    a("s_mov_b64 exec, %d" % ((1 << (NSH // 4)) - 1))
    a("buffer_atomic_swap v9, v8, s[28:31], 0 offen sc0 sc1")
    a("s_waitcnt vmcnt(0)")
    a("s_mov_b64 exec, 1")
    a("v_mov_b32 v5, 1")
    a("buffer_atomic_add v5, v4, s[24:27], 0 offen offset:4 sc1")
    a("s_mov_b64 exec, -1")
    a.label("L_snoinit")
    a("s_waitcnt vmcnt(0)")
    a("v_cmp_gt_i32 vcc, 0, v7")
    a("v_add_u32 v10, 4096, v7")
    a("v_bfrev_b32 v11, 1")
    a("v_cndmask_b32 v7, v7, v10, vcc")
    a("v_lshlrev_b32 v7, 14, v7")
    a("v_or_b32 v10, 1, v7")
    a("v_cndmask_b32 v7, v7, v10, s[46:47]")
    a("v_and_b32 v7, 0x7fffffff, v7")
    a("v_cndmask_b32 v7, v11, v7, s[44:45]")
    a("s_lshl_b32 s43, s3, 8")
    a("s_add_u32 s43, s43, 0x%x" % CB)
    a("v_mov_b32 v8, s43")
    a("v_mov_b32 v1, %d" % (QB + 256))
    a("v_mov_b32 v2, %d" % QB)
    a("s_sub_u32 s49, s40, %d" % (D + LEAD))
    a("s_barrier")
    a("s_mov_b64 exec, 1")
    a.label("L_sflag")
    a("buffer_load_dword v5, v4, s[24:27], 0 offen offset:4 sc1")
    a("s_waitcnt vmcnt(0)")
    a("v_readfirstlane_b32 s48, v5")
    a("s_cmp_lg_u32 s48, 0")
    a("s_cbranch_scc1 L_sloop")
    a("s_sleep 4")
    a("s_branch L_sflag")
    a.label("L_swait")
    a("s_sleep %d" % slp)
    a.label("L_sloop")
    a("ds_read_b128 v[12:15], v1")
    a("v_mov_b32 v5, 1")
    a("s_waitcnt lgkmcnt(0)")
    a("v_max3_u32 v12, v12, v13, v14")
    a("v_max_u32 v12, v12, v15")
    a("s_nop 0")
    a("v_readfirstlane_b32 s48, v12")
    a("s_cmp_lt_u32 s48, s49")
    a("s_cbranch_scc1 L_swait")
    a("buffer_atomic_add v5, v8, s[28:31], 0 offen sc0 sc1")
    a("s_add_u32 s49, s49, 1")
    a("s_waitcnt vmcnt(0)")
    a("v_readfirstlane_b32 s48, v5")
    a("s_min_u32 s48, s48, 63")
    a("s_nop 3")
    a("v_readlane_b32 s50, v7, s48")
    a("s_nop 1")
    a("v_mov_b32 v5, s50")
    a("ds_write_b32 v2, v5")
    a("v_add_u32 v2, 4, v2")
    a("s_cmp_lt_i32 s50, 0")
    a("s_cbranch_scc0 L_sloop")
    a("s_waitcnt lgkmcnt(0)")
    a("s_endpgm")

def comb(a, G):
    a.raw(".globl fd_comb_kernel")
    a.raw(".p2align 8")
    a.raw(".type fd_comb_kernel,@function")
    a.label("fd_comb_kernel")
    NS = 8
    a("s_cmp_ge_u32 s2, 256")
    a("s_cbranch_scc1 L_comb_end")
    a("s_load_dwordx2 s[8:9], s[0:1], 56")
    a("s_load_dwordx2 s[12:13], s[0:1], 40")
    a("s_and_b32 s3, s2, 7")
    a("s_bfe_u32 s4, s2, 0x20003")
    a("s_lshr_b32 s5, s2, 5")
    a("s_lshl_b32 s6, s5, 18")
    a("s_lshl_b32 s7, s3, 7")
    a("s_add_u32 s6, s6, s7")
    a("s_lshl_b32 s7, s4, 5")
    a("s_add_u32 s6, s6, s7")
    a("v_lshrrev_b32 v2, 1, v0")
    a("v_and_b32 v3, 1, v0")
    a("v_lshl_add_u32 v1, v3, 4, s6")
    a("v_lshl_add_u32 v1, v2, 10, v1")
    a("s_lshr_b32 s16, s5, 1")
    a("s_lshl_b32 s16, s16, 3")
    a("s_lshl_b32 s7, s4, 1")
    a("s_add_u32 s16, s16, s7")
    a("v_add_u32 v3, s16, v3")
    a("v_lshl_add_u32 v2, v3, 8, v2")
    a("v_lshlrev_b32 v2, 3, v2")
    a("s_mov_b32 s10, 0x10000000")
    a("s_mov_b32 s11, 0x00020000")
    a("s_mov_b32 s14, 8192")
    a("s_mov_b32 s15, 0x00020000")
    a("s_mov_b32 s20, 0x200000")
    for k in range(1, NS):
        a("s_mov_b32 s%d, %d" % (20 + k, 32768 * k))
    a("s_waitcnt lgkmcnt(0)")
    a("s_and_b32 s9, s9, 0xffff")
    vOwn = 8
    vO = vOwn + 2 * NS
    for k in range(NS):
        a("buffer_load_dwordx2 %s, v2, s[8:11], s20 offen offset:%d" % (vr(vOwn + 2 * k, 2), 256 * k))
    for k in range(NS):
        so = "0" if k < 1 else "s%d" % (20 + k)
        a("buffer_load_dwordx4 %s, v1, s[8:11], %s offen" % (vr(vO + 4 * k, 4), so))
    a("s_and_b32 s13, s13, 0xffff")
    a("s_and_b32 s6, s3, 1")
    a("s_lshl_b32 s6, s6, 7")
    a("s_and_b32 s7, s5, 1")
    a("s_lshl_b32 s7, s7, 6")
    a("s_add_u32 s6, s6, s7")
    a("s_lshr_b32 s7, s3, 1")
    a("s_lshl_b32 s7, s7, 3")
    a("s_add_u32 s6, s6, s7")
    a("v_lshl_add_u32 v1, v3, 8, s6")
    a("v_and_b32 v2, 32, v0")
    a("v_add_u32 v1, v1, v2")
    a("v_bfe_u32 v2, v0, 4, 1")
    a("v_lshl_add_u32 v1, v2, 2, v1")
    a("v_mov_b32 v7, 0xffff0000")
    a("s_waitcnt vmcnt(%d)" % NS)
    a("v_max3_f32 v4, %s, %s, %s" % (vr(vOwn), vr(vOwn + 2), vr(vOwn + 4)))
    a("v_max3_f32 v4, v4, %s, %s" % (vr(vOwn + 6), vr(vOwn + 8)))
    a("v_max3_f32 v4, v4, %s, %s" % (vr(vOwn + 10), vr(vOwn + 12)))
    a("v_max_f32 v4, v4, %s" % vr(vOwn + 14))
    def red_row(regs, op):
        for ctl in ("quad_perm:[2,3,0,1]", "row_ror:4", "row_ror:8"):
            a("s_nop %d" % (1 if len(regs) == 1 else 0))
            for reg in regs:
                a("%s_dpp %s, %s, %s %s row_mask:0xf bank_mask:0xf" % (op, vr(reg), vr(reg), vr(reg), ctl))
    def red_hi(reg, tmp, op):
        a("v_mov_b32 %s, %s" % (vr(tmp), vr(reg)))
        a("s_nop 1")
        a("v_permlane16_swap_b32 %s, %s" % (vr(reg), vr(tmp)))
        a("%s %s, %s, %s" % (op, vr(reg), vr(reg), vr(tmp)))
        a("v_mov_b32 %s, %s" % (vr(tmp), vr(reg)))
        a("s_nop 1")
        a("v_permlane32_swap_b32 %s, %s" % (vr(reg), vr(tmp)))
        a("%s %s, %s, %s" % (op, vr(reg), vr(reg), vr(tmp)))
    red_row([4], "v_max_f32")
    red_hi(4, 5, "v_max_f32")
    for k in range(NS):
        a("v_sub_f32 %s, %s, v4" % (vr(vOwn + 2 * k), vr(vOwn + 2 * k)))
    for k in range(NS):
        a("v_exp_f32 %s, %s" % (vr(vOwn + 2 * k), vr(vOwn + 2 * k)))
    a("v_mul_f32 v6, %s, %s" % (vr(vOwn), vr(vOwn + 1)))
    for k in range(1, NS):
        a("v_fmac_f32 v6, %s, %s" % (vr(vOwn + 2 * k), vr(vOwn + 2 * k + 1)))
    vR = vO + 4 * NS
    vU = vR + 8
    for k in range(NS):
        a("s_waitcnt vmcnt(%d)" % (NS - 1 - k))
        for d in range(4):
            a("v_lshlrev_b32 %s, 16, %s" % (vr(vU + 2 * d), vr(vO + 4 * k + d)))
            a("v_and_b32 %s, v7, %s" % (vr(vU + 2 * d + 1), vr(vO + 4 * k + d)))
        for d in range(4):
            w = vr(vOwn + 2 * k, 2)
            if k == 0:
                a("v_pk_mul_f32 %s, %s, %s op_sel_hi:[1,0]" % (vr(vR + 2 * d, 2), vr(vU + 2 * d, 2), w))
            else:
                a("v_pk_fma_f32 %s, %s, %s, %s op_sel_hi:[1,0,1]" % (vr(vR + 2 * d, 2), vr(vU + 2 * d, 2), w, vr(vR + 2 * d, 2)))
        if k == 0:
            red_row([6], "v_add_f32")
        if k == 1:
            red_hi(6, 5, "v_add_f32")
        if k == 2:
            a("v_rcp_f32 v6, v6")
    a("s_nop 1")
    for r in range(4):
        a("v_permlane32_swap_b32 %s, %s" % (vr(vR + r), vr(vR + 4 + r)))
    for r in range(4):
        a("v_add_f32 %s, %s, %s" % (vr(vR + r), vr(vR + r), vr(vR + 4 + r)))
    a("s_nop 0")
    for r in range(2):
        a("v_permlane16_swap_b32 %s, %s" % (vr(vR + r), vr(vR + 2 + r)))
    for r in range(2):
        a("v_add_f32 %s, %s, %s" % (vr(vR + r), vr(vR + r), vr(vR + 2 + r)))
    red_row([vR, vR + 1], "v_add_f32")
    a("v_mul_f32 %s, %s, v6" % (vr(vR), vr(vR)))
    a("v_mul_f32 %s, %s, v6" % (vr(vR + 1), vr(vR + 1)))
    a("s_mov_b32 exec_lo, 0x00030003")
    a("s_mov_b32 exec_hi, 0x00030003")
    a("v_cvt_pk_bf16_f32 %s, %s, %s" % (vr(vR), vr(vR), vr(vR + 1)))
    a("buffer_store_dword %s, v1, s[12:15], 0 offen" % vr(vR))
    a.label("L_comb_end")
    a("s_endpgm")
    return vU + 8

if __name__ == "__main__":
    out = sys.argv[1] if len(sys.argv) > 1 else "cdna_kernels/%s.s" % NAME
    kw = {}
    for x in sys.argv[2:]:
        k, v = x.split("=")
        kw[k] = int(v) if v.lstrip('-').isdigit() else v.replace("+", " ")
    open(out, "w").write(gen(**kw))
```
